```python
import torch

def _softmax(x, axis=-1):
    return torch.softmax(x, dim=axis)
def _gelu(x):
    return torch.nn.functional.gelu(x, approximate="tanh")
def _silu(x):
    return torch.nn.functional.silu(x)
def _sigmoid(x):
    return torch.sigmoid(x)
def _layernorm(x, axis=-1, eps=1e-5):
    m = x.mean(dim=axis, keepdim=True)
    v = x.var(dim=axis, keepdim=True, unbiased=False)
    return (x - m) / torch.sqrt(v + eps)
def _scatter_add(tgt, idx, src, axis=0):
    return tgt.clone().index_add_(axis, idx, src)
def _segment_sum(src, seg, n):
    out = torch.zeros((n,) + src.shape[1:], dtype=src.dtype)
    return out.index_add_(0, seg, src)
def _pad(x, pw):
    flat = tuple(v for pair in reversed(pw) for v in pair)
    return torch.nn.functional.pad(x, flat)

kernel_name = 'standalone__detection_seg_fpn_lateral__vision'

def setup_inputs():

    _w = (lambda a: (lambda t: t.to(torch.bfloat16) if t.is_floating_point() else t)(torch.as_tensor(a)))
    H = W = (384 // 2) * 2
    C = 96
    k = 3
    return {
        "c_fine": _w((lambda *s: torch.randn(*s, dtype=torch.bfloat16) * 0.05)(1, H, W, C)),
        "p_coarse": _w((lambda *s: torch.randn(*s, dtype=torch.bfloat16) * 0.05)(1, H // 2, W // 2, C)),
        "w_lat": _w((lambda *s: torch.randn(*s, dtype=torch.bfloat16) * 0.05)(C, C)),
        "w_out": _w((lambda *s: torch.randn(*s, dtype=torch.bfloat16) * 0.05)(k, k, C, C)),
    }

def reference(c_fine, p_coarse, w_lat, w_out):
    B, H, W, C = c_fine.shape
    k = 3
    lat = torch.einsum("bhwc,cd->bhwd", c_fine, w_lat)
    up = (lambda x, n, axis: torch.repeat_interleave(x, n, dim=axis))((lambda x, n, axis: torch.repeat_interleave(x, n, dim=axis))(p_coarse, 2, axis=1), 2, axis=2)
    m = lat + up
    pad = k // 2
    mp = _pad(m, ((0, 0), (pad, pad), (pad, pad), (0, 0)))
    o = None
    for di in range(k):
        for dj in range(k):
            t = torch.einsum("bhwc,cd->bhwd", mp[:, di:di + H, dj:dj + W, :], w_out[di, dj])
            o = t if o is None else o + t
    return o
```

```python
import sys
from collections import defaultdict

NAME = "standalone__detection_seg_fpn_lateral__vision"

ROWB = 9600
WLS = 4 * ROWB
TAPS_A = 6 * ROWB
TAP4 = 14 * ROWB
DUMMY = TAP4 + 18432
LDS_TOTAL = 163840
OOB = 0x40000000

S_CF, S_P, S_WL, S_W, S_O = 4, 8, 12, 16, 20
sW, sH, sS, sBY, sBX, sY0 = 24, 25, 26, 27, 28, 29
sCF = [30, 31, 32]
sP = 33
sO = [34, 35, 36]
sLoop = 37
sT = [38, 39, 50, 51, 52, 53, 54, 55]

vCF, vP, vO = 3, 4, 5
vB = [6, 7, 8]
vWr = [9, 10, 11]
ACC = 12
BBUF = [48, 52, 56, 60, 64, 68, 244, 248, 252]
LACC = 72
CF = 84
PV = 120
WL = 140
WV = 176
LEAD = 8


def wreg(f):
    if f < 64:
        return "a[%d:%d]" % (4 * f, 4 * f + 3)
    r = WV + 4 * (f - 64)
    return "v[%d:%d]" % (r, r + 3)


def wreg_half(f, half):
    if f < 64:
        r = 4 * f + 2 * half
        return "a[%d:%d]" % (r, r + 1)
    r = WV + 4 * (f - 64) + 2 * half
    return "v[%d:%d]" % (r, r + 1)


def v4(r):
    return "v[%d:%d]" % (r, r + 3)


def v2(r):
    return "v[%d:%d]" % (r, r + 1)


class Gen:
    def __init__(self):
        self.out = []
        self.lg = []
        self.vm = []

    def e(self, s):
        self.out.append("    " + s)

    def label(self, s):
        self.out.append(s + ":")

    def ds(self, s, tag=None):
        self.e(s)
        self.lg.append(tag)

    def vmem(self, s, tag=None):
        self.e(s)
        self.vm.append(tag)

    def _need(self, q, tag, mx):
        if tag not in q:
            return None
        idx = len(q) - 1 - q[::-1].index(tag)
        n = len(q) - 1 - idx
        n = min(n, mx)
        del q[: len(q) - n]
        return n

    def wait(self, lg=None, vm=None):
        parts = []
        if vm is not None:
            n = self._need(self.vm, vm, 63)
            if n is not None:
                parts.append("vmcnt(%d)" % n)
        if lg is not None:
            n = self._need(self.lg, lg, 15)
            if n is not None:
                parts.append("lgkmcnt(%d)" % n)
        if parts:
            self.e("s_waitcnt " + " ".join(parts))

    def drain(self, lg=False, vm=False):
        parts = []
        if vm:
            parts.append("vmcnt(0)")
            self.vm = []
        if lg:
            parts.append("lgkmcnt(0)")
            self.lg = []
        self.e("s_waitcnt " + " ".join(parts))


g = Gen()
e = g.e


def srd(d, ptr, nbytes):
    e("s_mov_b32 s%d, s%d" % (d, ptr))
    e("s_and_b32 s%d, s%d, 0xffff" % (d + 1, ptr + 1))
    e("s_mov_b32 s%d, 0x%x" % (d + 2, nbytes))
    e("s_mov_b32 s%d, 0x00020000" % (d + 3))


def lat_init(acc, pv):
    r = []
    for mt in range(3):
        a = acc + 4 * mt
        p = pv + 2 * mt
        r.append("v_lshlrev_b32 v%d, 16, v%d" % (a, p))
        r.append("v_and_b32 v%d, 0xffff0000, v%d" % (a + 1, p))
        r.append("v_lshlrev_b32 v%d, 16, v%d" % (a + 2, p + 1))
        r.append("v_and_b32 v%d, 0xffff0000, v%d" % (a + 3, p + 1))
    return r


def lat_mfma(acc, cf, ks, mt):
    a = acc + 4 * mt
    return "v_mfma_f32_16x16x32_bf16 %s, %s, %s, %s" % (
        v4(a), v4(WL + (ks * 3 + mt) * 4), v4(cf + 4 * ks), v4(a))


def lat_block(cf, pv, waddr, woffs):
    for s in lat_init(LACC, pv):
        e(s)
    e("s_nop 1")
    for ks in range(3):
        for mt in range(3):
            e(lat_mfma(LACC, cf, ks, mt))
    e("s_nop 7")
    for mt in range(3):
        a = LACC + 4 * mt
        e("v_cvt_pk_bf16_f32 v%d, v%d, v%d" % (a, a, a + 1))
        e("v_cvt_pk_bf16_f32 v%d, v%d, v%d" % (a + 1, a + 2, a + 3))
        g.ds("ds_write_b64 v%d, %s offset:%d" % (waddr[mt], v2(a), woffs[mt]), "w")


def dma(srd_reg, vD, lds_base_expr_sreg, soff_sreg, inst_off):
    g.vmem("buffer_load_dwordx4 v%d, s[%d:%d], s%d offen offset:%d lds" % (
        vD, srd_reg, srd_reg + 3, soff_sreg, inst_off), "dma")


def main():
    hdr = open("cdna_kernels/%s.s.ref" % NAME).read().split("\n")
    for ln in hdr:
        if ln.startswith("; @launch"):
            break
        g.out.append(ln)
    g.out.append("; @launch grid=(256,1,1) block=(256,1,1) lds=%d" % LDS_TOTAL)
    g.out.append('.amdgcn_target "amdgcn-amd-amdhsa--gfx950"')
    g.out.append(".text")
    g.out.append(".globl %s_kernel" % NAME)
    g.out.append(".p2align 8")
    g.out.append(".type %s_kernel,@function" % NAME)
    g.label("%s_kernel" % NAME)

    e("s_cmp_ge_u32 s2, 256")
    e("s_cbranch_scc1 L_end")
    e("s_load_dwordx8 s[40:47], s[0:1], 0")
    e("s_load_dwordx2 s[48:49], s[0:1], 32")
    vL, vN, vQ, vT0, vT1, vT2, vD, vT, vTb, vTc = 244, 245, 246, 247, 248, 249, 250, 251, 252, 253
    e("v_and_b32 v%d, 63, v0" % vL)
    e("v_lshrrev_b32 v%d, 6, v0" % vT0)
    e("v_and_b32 v%d, 15, v%d" % (vN, vL))
    e("v_lshrrev_b32 v%d, 4, v%d" % (vQ, vL))
    e("v_readfirstlane_b32 s%d, v%d" % (sW, vT0))
    e("s_nop 3")
    e("s_and_b32 s%d, s%d, 1" % (sH, sW))
    e("s_lshr_b32 s%d, s%d, 1" % (sS, sW))
    e("s_lshr_b32 s%d, s2, 3" % sBY)
    e("s_and_b32 s%d, s2, 7" % sBX)
    e("s_mul_i32 s%d, s%d, 12" % (sY0, sBY))
    e("s_mul_i32 s%d, s%d, 9216" % (sT[0], sBX))
    e("s_mul_i32 s%d, s%d, 96" % (sT[1], sH))
    e("s_mul_i32 s%d, s%d, %d" % (sT[2], sS, ROWB))
    e("s_mul_i32 s%d, s%d, 4608" % (sT[3], sBX))
    e("v_mul_u32_u24 v%d, 192, v%d" % (vT0, vN))
    e("v_lshl_add_u32 v%d, v%d, 4, v%d" % (vT1, vQ, vT0))
    e("v_add_u32 v%d, s%d, v%d" % (vCF, sT[0], vT1))
    e("v_lshl_add_u32 v%d, v%d, 3, v%d" % (vT1, vQ, vT0))
    e("v_add_u32 v%d, s%d, v%d" % (vT1, sT[0], vT1))
    e("v_add_u32 v%d, s%d, v%d" % (vO, sT[1], vT1))
    e("v_lshrrev_b32 v%d, 1, v%d" % (vT1, vN))
    e("v_mul_u32_u24 v%d, 192, v%d" % (vT1, vT1))
    e("v_lshl_add_u32 v%d, v%d, 3, v%d" % (vT1, vQ, vT1))
    e("v_add_u32 v%d, s%d, v%d" % (vT1, sT[3], vT1))
    e("v_add_u32 v%d, s%d, v%d" % (vP, sT[1], vT1))
    for d in range(3):
        e("v_add_u32 v%d, %d, v%d" % (vT1, d, vN))
        e("v_bfe_u32 v%d, v%d, 2, 1" % (vT2, vT1))
        e("v_lshlrev_b32 v%d, 5, v%d" % (vT2, vT2))
        e("v_lshlrev_b32 v%d, 4, v%d" % (vT, vQ))
        e("v_xor_b32 v%d, v%d, v%d" % (vT2, vT2, vT))
        e("v_mul_u32_u24 v%d, 192, v%d" % (vT1, vT1))
        e("v_add3_u32 v%d, v%d, v%d, s%d" % (vB[d], vT1, vT2, sT[2]))
    e("v_add_u32 v%d, 1, v%d" % (vT1, vN))
    e("v_bfe_u32 v%d, v%d, 2, 1" % (vT2, vT1))
    e("v_lshlrev_b32 v%d, 5, v%d" % (vT2, vT2))
    e("v_mul_u32_u24 v%d, 192, v%d" % (vT1, vT1))
    e("v_lshlrev_b32 v%d, 3, v%d" % (vT, vQ))
    e("v_add_u32 v%d, s%d, v%d" % (vT, sT[1], vT))
    for mt in range(3):
        e("v_add_u32 v%d, %d, v%d" % (vTb, 32 * mt, vT))
        e("v_xor_b32 v%d, v%d, v%d" % (vTb, vTb, vT2))
        e("v_add3_u32 v%d, v%d, v%d, s%d" % (vWr[mt], vT1, vTb, sT[2]))
    e("v_lshlrev_b32 v%d, 4, v%d" % (vD, vL))
    e("v_lshrrev_b32 v%d, 2, v%d" % (vT1, vN))
    e("v_lshl_add_u32 v%d, v%d, 3, v%d" % (vT1, vQ, vT1))
    e("v_mul_u32_u24 v%d, 192, v%d" % (vT1, vT1))
    e("v_and_b32 v%d, 3, v%d" % (vT2, vN))
    e("v_lshl_add_u32 v%d, v%d, 3, v%d" % (vT1, vT2, vT1))
    e("v_add_u32 v%d, s%d, v%d" % (vT, sT[1], vT1))
    e("v_add_u32 v%d, 0x10000, v%d" % (vTb, vT))
    e("v_add_u32 v%d, 0x20000, v%d" % (vTc, vT))

    e("s_waitcnt lgkmcnt(0)")
    srd(S_CF, 40, 28311552)
    srd(S_P, 42, 7077888)
    srd(S_WL, 44, 18432)
    srd(S_W, 46, 165888)
    srd(S_O, 48, 28311552)

    def tr_addr(off):
        if off < 0x10000:
            return vT, off
        if off < 0x20000:
            return vTb, off - 0x10000
        return vTc, off - 0x20000

    e("s_mul_i32 s%d, s%d, 5" % (sT[4], sW))
    for i in range(5):
        e("s_add_u32 s%d, s%d, %d" % (sT[5], sT[4], i))
        e("s_min_u32 s%d, s%d, 17" % (sT[5], sT[5]))
        e("s_lshl_b32 s%d, s%d, 10" % (sT[5], sT[5]))
        e("s_add_u32 m0, s%d, %d" % (sT[5], WLS))
        e("s_nop 0")
        g.vmem("buffer_load_dwordx4 v%d, s[%d:%d], s%d offen lds" % (vD, S_WL, S_WL + 3, sT[5]), "dmawl")

    CF2, PV2 = 12, 48
    HCF, HPV = 176, 188
    e("s_add_u32 s%d, s%d, s%d" % (sT[4], sY0, sS))
    e("s_sub_u32 s%d, s%d, 1" % (sT[4], sT[4]))
    e("s_mul_i32 s%d, s%d, 73728" % (sT[5], sT[4]))
    e("s_ashr_i32 s%d, s%d, 1" % (sT[6], sT[4]))
    e("s_mul_i32 s%d, s%d, 36864" % (sT[6], sT[6]))
    e("s_cmp_lt_i32 s%d, 0" % sT[4])
    e("s_cselect_b32 s%d, 0x%x, s%d" % (sT[5], OOB, sT[5]))
    e("s_cselect_b32 s%d, 0x%x, s%d" % (sT[6], OOB, sT[6]))

    def lat_loads(cf, pv, scf_base, sp, tag):
        for t in range(3):
            if t == 0:
                so = scf_base
            else:
                e("s_add_u32 s%d, s%d, %d" % (sT[7], scf_base, 3072 * t))
                so = sT[7]
            for ks in range(3):
                g.vmem("buffer_load_dwordx4 %s, v%d, s[%d:%d], s%d offen offset:%d" % (
                    v4(cf + (t * 3 + ks) * 4), vCF, S_CF, S_CF + 3, so, 64 * ks), tag)
            for mt in range(3):
                g.vmem("buffer_load_dwordx2 %s, v%d, s[%d:%d], s%d offen offset:%d" % (
                    v2(pv + (t * 3 + mt) * 2), vP, S_P, S_P + 3, sp, 1536 * t + 32 * mt), tag)

    lat_loads(CF, PV, sT[5], sT[6], "u0")
    e("s_add_u32 s%d, s%d, 2" % (sT[4], sT[4]))
    e("s_mul_i32 s%d, s%d, 73728" % (sT[5], sT[4]))
    e("s_lshr_b32 s%d, s%d, 1" % (sT[6], sT[4]))
    e("s_mul_i32 s%d, s%d, 36864" % (sT[6], sT[6]))
    lat_loads(CF2, PV2, sT[5], sT[6], "u1")

    vHc, vHp, vHw = 194, 195, 196

    def halo_addr(rbase, cnt):
        e("s_mul_i32 s%d, s%d, 48" % (sT[4], sBX))
        e("s_mul_i32 s%d, s%d, 49" % (sT[5], sS))
        e("s_add_u32 s%d, s%d, s%d" % (sT[4], sT[4], sT[5]))
        e("s_sub_u32 s%d, s%d, 1" % (sT[4], sT[4]))
        e("s_add_u32 s%d, s%d, %d" % (sT[6], sY0, rbase))
        e("s_sub_u32 s%d, s%d, 1" % (sT[6], sT[6]))
        e("v_add_u32 v%d, s%d, v%d" % (vT1, sT[6], vN))
        e("v_cmp_gt_u32 vcc, 0x180, v%d" % vT1)
        e("v_cmp_gt_u32 s[56:57], %d, v%d" % (cnt, vN))
        e("s_and_b64 vcc, vcc, s[56:57]")
        e("s_cmp_lt_u32 s%d, 384" % sT[4])
        e("s_cselect_b64 s[58:59], -1, 0")
        e("s_and_b64 vcc, vcc, s[58:59]")
        e("v_mul_u32_u24 v%d, 384, v%d" % (vT2, vT1))
        e("v_add_u32 v%d, s%d, v%d" % (vT2, sT[4], vT2))
        e("v_mul_u32_u24 v%d, 192, v%d" % (vT2, vT2))
        e("v_lshl_add_u32 v%d, v%d, 4, v%d" % (vT2, vQ, vT2))
        e("v_mov_b32 v%d, 0x%x" % (vT0, OOB))
        e("v_cndmask_b32 v%d, v%d, v%d, vcc" % (vHc, vT0, vT2))
        e("v_lshrrev_b32 v%d, 1, v%d" % (vT2, vT1))
        e("v_mul_u32_u24 v%d, 192, v%d" % (vT2, vT2))
        e("s_lshr_b32 s%d, s%d, 1" % (sT[5], sT[4]))
        e("v_add_u32 v%d, s%d, v%d" % (vT2, sT[5], vT2))
        e("v_mul_u32_u24 v%d, 192, v%d" % (vT2, vT2))
        e("v_lshl_add_u32 v%d, v%d, 3, v%d" % (vT2, vQ, vT2))
        e("v_add_u32 v%d, s%d, v%d" % (vT2, sT[1], vT2))
        e("v_cndmask_b32 v%d, v%d, v%d, vcc" % (vHp, vT0, vT2))
        e("v_add_u32 v%d, %d, v%d" % (vT2, rbase, vN))
        e("v_mul_u32_u24 v%d, %d, v%d" % (vT2, ROWB, vT2))
        e("s_mul_i32 s%d, s%d, %d" % (sT[5], sS, 49 * 192))
        e("v_add_u32 v%d, s%d, v%d" % (vT2, sT[5], vT2))
        e("v_mov_b32 v%d, 0x%x" % (vT0, DUMMY))
        e("v_cndmask_b32 v%d, v%d, v%d, s[56:57]" % (vT2, vT0, vT2))
        e("v_lshl_add_u32 v%d, v%d, 3, v%d" % (vT2, vQ, vT2))
        e("v_add_u32 v%d, s%d, v%d" % (vHw, sT[1], vT2))

    def halo_loads(tag):
        for ks in range(3):
            g.vmem("buffer_load_dwordx4 %s, v%d, s[%d:%d], 0 offen offset:%d" % (
                v4(HCF + 4 * ks), vHc, S_CF, S_CF + 3, 64 * ks), tag)
        for mt in range(3):
            g.vmem("buffer_load_dwordx2 %s, v%d, s[%d:%d], 0 offen offset:%d" % (
                v2(HPV + 2 * mt), vHp, S_P, S_P + 3, 32 * mt), tag)

    halo_addr(0, 4)
    halo_loads("h1")

    def dma_taps(lds_base, gbase):
        e("s_mul_i32 s%d, s%d, %d" % (sT[4], sW, 18 * 1024))
        for i in range(18):
            if i % 4 == 0:
                e("s_add_u32 s%d, s%d, %d" % (sT[5], sT[4], gbase + i * 1024))
                e("s_add_u32 m0, s%d, %d" % (sT[4], lds_base + i * 1024))
                e("s_nop 0")
            g.vmem("buffer_load_dwordx4 v%d, s[%d:%d], s%d offen offset:%d lds" % (
                vD, S_W, S_W + 3, sT[5], (i % 4) * 1024), "dmaw")

    dma_taps(TAPS_A, 0)
    e("s_mul_i32 s%d, s%d, 5" % (sT[4], sW))
    for i in range(5):
        e("s_add_u32 s%d, s%d, %d" % (sT[5], sT[4], i))
        e("s_min_u32 s%d, s%d, 17" % (sT[5], sT[5]))
        e("s_lshl_b32 s%d, s%d, 10" % (sT[5], sT[5]))
        e("s_add_u32 m0, s%d, %d" % (sT[5], TAP4))
        e("s_add_u32 s%d, s%d, %d" % (sT[5], sT[5], 4 * 18432))
        g.vmem("buffer_load_dwordx4 v%d, s[%d:%d], s%d offen lds" % (vD, S_W, S_W + 3, sT[5]), "dmaw")

    g.wait(vm="dmawl")
    e("s_barrier")
    for ks in range(3):
        for mt in range(3):
            r = WL + (ks * 3 + mt) * 4
            for half in range(2):
                a, o = tr_addr(WLS + ks * 6144 + 32 * mt + 768 * half)
                g.ds("ds_read_b64_tr_b16 %s, v%d offset:%d" % (v2(r + 2 * half), a, o), "wl")
    g.drain(lg=True)
    g.wait(vm="u0")
    for t in range(3):
        lat_block(CF + t * 12, PV + t * 6, vWr, [t * 3072] * 3)
    g.wait(vm="u1")
    for t in range(3):
        lat_block(CF2 + t * 12, PV2 + t * 6, vWr, [2 * ROWB + t * 3072] * 3)
    g.wait(vm="h1")
    lat_block(HCF, HPV, [vHw] * 3, [0, 32, 64])

    halo_addr(4, 10)
    e("s_nop 4")
    halo_loads("h2")

    g.drain(lg=True, vm=True)
    e("s_barrier")

    def read_tap(tau, base):
        for ks in range(3):
            for mt in range(3):
                f = (tau * 3 + ks) * 3 + mt
                for half in range(2):
                    a, o = tr_addr(base + ks * 6144 + 32 * mt + 768 * half)
                    g.ds("ds_read_b64_tr_b16 %s, v%d offset:%d" % (wreg_half(f, half), a, o), "wf")

    for tau in range(4):
        read_tap(tau, TAPS_A + tau * 18432)
        g.drain(lg=True)
    read_tap(4, TAP4)
    g.drain(lg=True)
    e("s_barrier")
    dma_taps(TAPS_A, 5 * 18432)
    g.drain(vm=True)
    e("s_barrier")
    for s in lat_init(LACC, HPV):
        e(s)
    e("s_nop 1")
    for ks in range(3):
        for mt in range(3):
            e(lat_mfma(LACC, HCF, ks, mt))
    e("s_nop 7")
    HRES = 12
    for mt in range(3):
        a = LACC + 4 * mt
        e("v_cvt_pk_bf16_f32 v%d, v%d, v%d" % (HRES + 2 * mt, a, a + 1))
        e("v_cvt_pk_bf16_f32 v%d, v%d, v%d" % (HRES + 2 * mt + 1, a + 2, a + 3))
    e("v_mov_b32 v%d, v%d" % (HRES + 6, vHw))
    for tau in range(5, 9):
        read_tap(tau, TAPS_A + (tau - 5) * 18432)
        g.drain(lg=True)
    e("s_barrier")
    for mt in range(3):
        g.ds("ds_write_b64 v%d, %s offset:%d" % (HRES + 6, v2(HRES + 2 * mt), 32 * mt), "w")

    e("s_add_u32 s%d, s%d, s%d" % (sT[4], sY0, sS))
    e("s_add_u32 s%d, s%d, 3" % (sT[5], sT[4]))
    e("s_mul_i32 s%d, s%d, 73728" % (sCF[0], sT[5]))
    e("s_add_u32 s%d, s%d, 3072" % (sCF[1], sCF[0]))
    e("s_add_u32 s%d, s%d, 6144" % (sCF[2], sCF[0]))
    e("s_lshr_b32 s%d, s%d, 1" % (sP, sT[5]))
    e("s_mul_i32 s%d, s%d, 36864" % (sP, sP))
    e("s_mul_i32 s%d, s%d, 73728" % (sO[0], sT[4]))
    e("s_add_u32 s%d, s%d, 3072" % (sO[1], sO[0]))
    e("s_add_u32 s%d, s%d, 6144" % (sO[2], sO[0]))
    for mt in range(3):
        e("v_add_u32 v%d, %d, v%d" % (vWr[mt], 4 * ROWB, vWr[mt]))

    def issue_lat_loads(t):
        r = []
        for ks in range(3):
            r.append(("vm", "buffer_load_dwordx4 %s, v%d, s[%d:%d], s%d offen offset:%d" % (
                v4(CF + (t * 3 + ks) * 4), vCF, S_CF, S_CF + 3, sCF[t], 64 * ks), "cf%d" % t))
        for mt in range(3):
            r.append(("vm", "buffer_load_dwordx2 %s, v%d, s[%d:%d], s%d offen offset:%d" % (
                v2(PV + (t * 3 + mt) * 2), vP, S_P, S_P + 3, sP, 1536 * t + 32 * mt), "cf%d" % t))
        return r

    def advance_loads():
        r = []
        for t in range(3):
            r.append(("i", "s_add_u32 s%d, s%d, %d" % (sCF[t], sCF[t], 2 * 73728), None))
        r.append(("i", "s_add_u32 s%d, s%d, 36864" % (sP, sP), None))
        return r

    def run(items):
        for kind, s, tag in items:
            if kind == "vm":
                g.vmem(s, tag)
            elif kind == "ds":
                g.ds(s, tag)
            elif kind == "wvm":
                g.wait(vm=tag)
            elif kind == "wlg":
                g.wait(lg=tag)
            else:
                e(s)

    for t in range(3):
        run(issue_lat_loads(t))
    run(advance_loads())

    def bread(sig, bias):
        kap, t = sig // 3, sig % 3
        tau, ks = kap // 3, kap % 3
        di, dj = tau // 3, tau % 3
        off = di * ROWB + t * 3072 + 64 * ks + bias
        return "ds_read_b128 %s, v%d offset:%d" % (v4(BBUF[sig % 9]), vB[dj], off)

    g.drain(lg=True, vm=True)
    e("s_barrier")
    for sig in range(LEAD):
        g.ds(bread(sig, 0), "B%d" % (sig % 9))

    def drain_items(t):
        r = []
        for mt in range(3):
            a = ACC + (t * 3 + mt) * 4
            r.append(("i", "v_cvt_pk_bf16_f32 v%d, v%d, v%d" % (a, a, a + 1), None))
            r.append(("i", "v_cvt_pk_bf16_f32 v%d, v%d, v%d" % (a + 1, a + 2, a + 3), None))
            r.append(("vm", "buffer_store_dwordx2 %s, v%d, s[%d:%d], s%d offen offset:%d" % (
                v2(a), vO, S_O, S_O + 3, sO[t], 32 * mt), "st"))
        return r

    def step(lateral, prev, last, loop_oob=False):
        pre = defaultdict(list)
        mid = defaultdict(list)
        if prev:
            for t in range(3):
                pre[t] += drain_items(t)
            for t in range(3):
                mid[3].append(("i", "s_add_u32 s%d, s%d, %d" % (sO[t], sO[t], 2 * 73728), None))
        if lateral:
            for t in range(3):
                b = 12 + 22 * t
                init = lat_init(LACC, PV + t * 6)
                pre[b].append(("wvm", None, "cf%d" % t))
                for i, s in enumerate(init):
                    mid[b + i // 4].append(("i", s, None))
                k = 0
                for ks in range(3):
                    for mt in range(3):
                        mid[b + 3 + k].append(("lm", lat_mfma(LACC, CF + t * 12, ks, mt), None))
                        k += 1
                for mt in range(3):
                    a = LACC + 4 * mt
                    mid[b + 14 + mt].append(("i", "v_cvt_pk_bf16_f32 v%d, v%d, v%d" % (a, a, a + 1), None))
                    mid[b + 14 + mt].append(("i", "v_cvt_pk_bf16_f32 v%d, v%d, v%d" % (a + 1, a + 2, a + 3), None))
                    mid[b + 14 + mt].append(("ds", "ds_write_b64 v%d, %s offset:%d" % (
                        vWr[mt], v2(a), t * 3072), "w"))
                ld = issue_lat_loads(t)
                for i, it in enumerate(ld):
                    mid[b + 12 + i].append(it)
            adv = advance_loads()
            if loop_oob:
                adv.append(("i", "s_cmp_eq_u32 s%d, 2" % sLoop, None))
                for t in range(3):
                    adv.append(("i", "s_cselect_b32 s%d, 0x%x, s%d" % (sCF[t], OOB, sCF[t]), None))
                adv.append(("i", "s_cselect_b32 s%d, 0x%x, s%d" % (sP, OOB, sP), None))
            mid[79] += adv
            for mt in range(3):
                mid[78].append(("i", "v_add_u32 v%d, %d, v%d" % (vWr[mt], 2 * ROWB, vWr[mt]), None))
        for sig in range(81):
            kap, t = sig // 3, sig % 3
            run(pre[sig])
            g.wait(lg="B%d" % (sig % 9))
            items = [x for x in mid[sig] if x[0] != "lm"]
            lms = [x for x in mid[sig] if x[0] == "lm"]
            per = (len(items) + 2) // 3
            for mt in range(3):
                a = ACC + (t * 3 + mt) * 4
                c = "0" if kap == 0 else v4(a)
                e("v_mfma_f32_16x16x32_bf16 %s, %s, %s, %s" % (v4(a), wreg(kap * 3 + mt), v4(BBUF[sig % 9]), c))
                run(items[mt * per:(mt + 1) * per])
            for x in lms:
                e(x[1])
            nxt = sig + LEAD
            if nxt == 27:
                g.wait(lg="w")
                e("s_barrier")
            if nxt < 81:
                g.ds(bread(nxt, 0), "B%d" % (nxt % 9))
            elif not last:
                g.ds(bread(nxt - 81, 2 * ROWB), "B%d" % (nxt % 9))
        if not last:
            for d in range(3):
                e("v_add_u32 v%d, %d, v%d" % (vB[d], 2 * ROWB, vB[d]))

    step(lateral=True, prev=False, last=False)
    e("s_mov_b32 s%d, 0" % sLoop)
    g.label("L_loop")
    lg0, vm0 = list(g.lg), list(g.vm)
    save_out = list(g.out)
    step(lateral=True, prev=True, last=False, loop_oob=True)
    lg1, vm1 = list(g.lg), list(g.vm)
    g.out = save_out
    assert lg1 == lg0, (lg0, lg1)
    g.lg, g.vm = list(lg1), list(vm1)
    step(lateral=True, prev=True, last=False, loop_oob=True)
    assert g.lg == lg1 and g.vm == vm1, (g.vm, vm1)
    e("s_add_u32 s%d, s%d, 1" % (sLoop, sLoop))
    e("s_cmp_lt_u32 s%d, 4" % sLoop)
    e("s_cbranch_scc1 L_loop")
    step(lateral=False, prev=True, last=True)
    e("s_nop 7")
    for t in range(3):
        run(drain_items(t))
    g.label("L_end")
    e("s_endpgm")
    g.out.append('.section .rodata,"a"')
    g.out.append(".p2align 6")
    g.out.append(".amdhsa_kernel %s_kernel" % NAME)
    g.out.append("  .amdhsa_next_free_vgpr 512")
    g.out.append("  .amdhsa_next_free_sgpr 102")
    g.out.append("  .amdhsa_accum_offset 256")
    g.out.append("  .amdhsa_group_segment_fixed_size 0")
    g.out.append("  .amdhsa_kernarg_size 56")
    g.out.append("  .amdhsa_user_sgpr_count 2")
    g.out.append("  .amdhsa_user_sgpr_kernarg_segment_ptr 1")
    g.out.append("  .amdhsa_system_sgpr_workgroup_id_x 1")
    g.out.append(".end_amdhsa_kernel")
    outp = sys.argv[1] if len(sys.argv) > 1 else "cdna_kernels/%s.s" % NAME
    open(outp, "w").write("\n".join(g.out) + "\n")
    print("wrote", outp, len(g.out), "lines")


main()
```

```python
import sys, os
from collections import defaultdict

NAME = "standalone__detection_seg_fpn_lateral__vision"

ROWB = 9600
PB = 14 * ROWB
DUMMY = PB
PS0 = PB + 192
LDS_TOTAL = 163840
OOB = 0x40000000
LDS_DROP = 0x30000
SLOT = [4, 6, 8, 10, 12]
WLROW = SLOT[0]
TAPROW = [12, 10, 8, 6, 12, 10, 8, 12, 10]
TAP_ISSUE = {1: 4, 2: 5, 3: 6, 5: 7, 6: 8}

S_CF, S_P, S_WL, S_W, S_O = 4, 8, 12, 16, 20
sW, sH, sS, sBY, sBX, sY0 = 24, 25, 26, 27, 28, 29
sCFd, sRow, sPg, sPl = 30, 31, 32, 33
sO = [34, 35, 36]
sLoop = 37
sT = [38, 39, 50, 51, 52, 53, 54, 55]
sFlW, sDirR, sDirP, sPi = 56, 57, 58, 59
sLoW, sGoW, sPw1, sPw2 = 60, 61, 62, 63
sYb, sDir, sF = 40, 41, 42
ST0 = 64

vTa2, vD, vTm2 = 0, 1, 2
vO2 = 2
vCR, vP, vO = 3, 4, 5
vB = [6, 7, 8]
vWr = [9, 10]
vP2 = 11
ACC = 12
BBUF = [48, 52, 56, 60, 64, 68, 244, 248, 252]
LACC = 72
CF = 84
PV = 120
vTa, vTm = 138, 139
WL = 140
WV = 176
LEAD = 8

STAMPS = int(os.environ.get("STAMPS", "0"))
EXP = os.environ.get("EXP", "")


def wreg(f):
    if f < 64:
        return "a[%d:%d]" % (4 * f, 4 * f + 3)
    r = WV + 4 * (f - 64)
    return "v[%d:%d]" % (r, r + 3)


def wreg_half(f, half):
    if f < 64:
        r = 4 * f + 2 * half
        return "a[%d:%d]" % (r, r + 1)
    r = WV + 4 * (f - 64) + 2 * half
    return "v[%d:%d]" % (r, r + 1)


def v4(r):
    return "v[%d:%d]" % (r, r + 3)


def v2(r):
    return "v[%d:%d]" % (r, r + 1)


class Wait:
    def __init__(self, vm, lg):
        self.vm, self.lg = vm, lg

    def merge(self, o):
        f = lambda a, b: b if a is None else (a if b is None else min(a, b))
        self.vm, self.lg = f(self.vm, o.vm), f(self.lg, o.lg)

    def text(self):
        parts = []
        if self.vm is not None:
            parts.append("vmcnt(%d)" % self.vm)
        if self.lg is not None:
            parts.append("lgkmcnt(%d)" % self.lg)
        return ("    s_waitcnt " + " ".join(parts)) if parts else None


class Gen:
    def __init__(self):
        self.out = []
        self.lg = []
        self.vm = []

    def e(self, s):
        self.out.append("    " + s)

    def label(self, s):
        self.out.append(s + ":")

    def ds(self, s, tag=None):
        self.e(s)
        self.lg.append(tag)

    def vmem(self, s, tag=None):
        self.e(s)
        self.vm.append(tag)

    def _need(self, q, tag, mx, oldest=False):
        if tag is None or tag not in q:
            return None
        if oldest:
            pos = [i for i, x in enumerate(q) if x == tag]
            idx = pos[min(6, len(pos) - 1)]
        else:
            idx = len(q) - 1 - q[::-1].index(tag)
        n = len(q) - 1 - idx
        n = min(n, mx)
        del q[: len(q) - n]
        return n

    def wait(self, lg=None, vm=None, oldest=False):
        self.out.append(Wait(self._need(self.vm, vm, 63, oldest), self._need(self.lg, lg, 15)))

    def drain(self, lg=False, vm=False):
        self.out.append(Wait(0 if vm else None, 0 if lg else None))
        if vm:
            self.vm = []
        if lg:
            self.lg = []

    def text(self):
        r = []
        for x in self.out:
            if isinstance(x, Wait):
                t = x.text()
                if t:
                    r.append(t)
            else:
                r.append(x)
        return "\n".join(r) + "\n"


g = Gen()
e = g.e
nst = [0]


def stamp(i=None):
    if not STAMPS:
        return
    if i is None:
        i = nst[0]
    nst[0] = max(nst[0], i + 1)
    e("s_memtime s[100:101]")
    e("s_waitcnt lgkmcnt(0)")
    e("s_mov_b32 s%d, s100" % (ST0 + i))


def srd(d, ptr, nbytes):
    e("s_mov_b32 s%d, s%d" % (d, ptr))
    e("s_and_b32 s%d, s%d, 0xffff" % (d + 1, ptr + 1))
    e("s_mov_b32 s%d, 0x%x" % (d + 2, nbytes))
    e("s_mov_b32 s%d, 0x00020000" % (d + 3))


def lat_init(acc, pv):
    r = []
    for mt in range(3):
        a = acc + 4 * mt
        p = pv + 2 * mt
        r.append("v_lshlrev_b32 v%d, 16, v%d" % (a, p))
        r.append("v_and_b32 v%d, 0xffff0000, v%d" % (a + 1, p))
        r.append("v_lshlrev_b32 v%d, 16, v%d" % (a + 2, p + 1))
        r.append("v_and_b32 v%d, 0xffff0000, v%d" % (a + 3, p + 1))
    return r


def lat_mfma(acc, cf, ks, mt):
    a = acc + 4 * mt
    return "v_mfma_f32_16x16x32_bf16 %s, %s, %s, %s" % (
        v4(a), v4(WL + (ks * 3 + mt) * 4), v4(cf + 4 * ks), v4(a))


def run(items):
    for kind, s, tag in items:
        if kind == "vm":
            g.vmem(s, tag)
        elif kind == "vmx":
            e("s_mov_b64 exec, 0xffffffff")
            g.vmem(s, tag)
            e("s_mov_b64 exec, -1")
        elif kind == "vm8":
            e("s_mov_b64 exec, 0xff")
            g.vmem(s, tag)
            e("s_mov_b64 exec, -1")
        elif kind == "ds":
            g.ds(s, tag)
        elif kind == "wvm":
            g.wait(vm=tag)
        elif kind == "wlg":
            g.wait(lg=tag)
        else:
            e(s)


def w_dma(srd_reg, row, tau, tag):
    r = []
    r.append(("i", "s_add_u32 m0, s%d, %d" % (sLoW, row * ROWB), None))
    if tau is None:
        r.append(("i", "s_mov_b32 s%d, s%d" % (sT[7], sGoW), None))
    else:
        r.append(("i", "s_add_u32 s%d, s%d, %d" % (sT[7], sGoW, tau * 18432), None))
        if tau // 3 == 0:
            r.append(("i", "s_add_u32 s%d, s%d, s%d" % (sT[7], sT[7], sFlW), None))
        elif tau // 3 == 2:
            r.append(("i", "s_sub_u32 s%d, s%d, s%d" % (sT[7], sT[7], sFlW), None))
    for k in range(4):
        r.append(("vm", "buffer_load_dwordx4 v%d, s[%d:%d], s%d offen offset:%d lds" % (
            vD, srd_reg, srd_reg + 3, sT[7], 1024 * k), tag))
    r.append(("i", "s_add_u32 m0, m0, 4096", None))
    r.append(("i", "s_add_u32 s%d, s%d, 4096" % (sT[7], sT[7]), None))
    r.append(("vmx", "buffer_load_dwordx4 v%d, s[%d:%d], s%d offen lds" % (vD, srd_reg, srd_reg + 3, sT[7]), tag))
    return r


def raw_dma(tag):
    r = []
    r.append(("i", "s_add_u32 m0, s%d, s%d" % (sLoW, sRow), None))
    r.append(("i", "s_nop 0", None))
    for k in range(4):
        r.append(("vm", "buffer_load_dwordx4 v%d, s[%d:%d], s%d offen offset:%d lds" % (
            vD, S_CF, S_CF + 3, sCFd, 1024 * k), tag))
    r.append(("i", "s_add_u32 m0, m0, 4096", None))
    r.append(("i", "s_add_u32 s%d, s%d, 4096" % (sT[7], sCFd), None))
    r.append(("vmx", "buffer_load_dwordx4 v%d, s[%d:%d], s%d offen lds" % (vD, S_CF, S_CF + 3, sT[7]), tag))
    return r


def raw_adv():
    return [("i", "s_add_u32 s%d, s%d, s%d" % (sCFd, sCFd, sDirR), None),
            ("i", "s_add_u32 s%d, s%d, %d" % (sRow, sRow, 2 * ROWB), None)]


def p_dma(tag):
    r = []
    r.append(("i", "s_add_u32 m0, s%d, s%d" % (sPl, sPw1), None))
    r.append(("i", "s_add_u32 s%d, s%d, s%d" % (sT[7], sPg, sPw1), None))
    r.append(("vm", "buffer_load_dwordx4 v%d, s[%d:%d], s%d offen lds" % (vD, S_P, S_P + 3, sT[7]), tag))
    r.append(("i", "s_add_u32 m0, s%d, s%d" % (sPl, sPw2), None))
    r.append(("i", "s_add_u32 s%d, s%d, s%d" % (sT[7], sPg, sPw2), None))
    r.append(("vm8", "buffer_load_dwordx4 v%d, s[%d:%d], s%d offen lds" % (vD, S_P, S_P + 3, sT[7]), tag))
    return r


def p_adv():
    return [("i", "s_add_u32 s%d, s%d, s%d" % (sPg, sPg, sDirP), None),
            ("i", "s_add_u32 s%d, s%d, 4608" % (sPl, sPl), None),
            ("i", "s_cmp_eq_u32 s%d, %d" % (sPl, PS0 + 6 * 4608), None),
            ("i", "s_cselect_b32 s%d, %d, s%d" % (sPl, PS0, sPl), None)]


def tr_items(regfn, tag):
    r = []
    for ks in range(3):
        for mt in range(3):
            for half in range(2):
                co = 8 * mt if mt < 2 else 0
                if ks == 0:
                    a, o = (vTa if mt < 2 else vTa2), 768 * half + co
                elif ks == 1:
                    a, o = (vTm if mt < 2 else vTm2), 6144 + 768 * half + co
                else:
                    a, o = (vTa if mt < 2 else vTa2), ROWB + 3072 + 768 * half + co
                r.append(("ds", "ds_read_b64_tr_b16 %s, v%d offset:%d" % (regfn(ks, mt, half), a, o), tag))
    return r


trrow = [WLROW]


def tr_goto(row):
    d = (row - trrow[0]) * ROWB
    trrow[0] = row
    if d == 0:
        return []
    return [("i", "v_add_u32 v%d, 0x%x, v%d" % (x, d & 0xffffffff, x), None) for x in (vTa, vTm, vTa2, vTm2)]


def read_wl():
    run(tr_goto(WLROW))
    run(tr_items(lambda ks, mt, half: v2(WL + (ks * 3 + mt) * 4 + 2 * half), "wf"))


def read_tap(tau):
    run(tr_goto(TAPROW[tau]))
    run(tr_items(lambda ks, mt, half: wreg_half((tau * 3 + ks) * 3 + mt, half), "wf"))


def pack_items(a):
    return [("i", "v_cvt_pk_bf16_f32 v%d, v%d, v%d" % (a, a, a + 1), None),
            ("i", "v_cvt_pk_bf16_f32 v%d, v%d, v%d" % (a + 1, a + 2, a + 3), None),
            ("i", "v_cvt_pk_bf16_f32 v%d, v%d, v%d" % (a + 2, a + 4, a + 5), None),
            ("i", "v_cvt_pk_bf16_f32 v%d, v%d, v%d" % (a + 3, a + 6, a + 7), None),
            ("i", "v_cvt_pk_bf16_f32 v%d, v%d, v%d" % (a + 8, a + 8, a + 9), None),
            ("i", "v_cvt_pk_bf16_f32 v%d, v%d, v%d" % (a + 9, a + 10, a + 11), None)]


def raw_reads(cf, off, tag):
    r = []
    for t in range(3):
        for ks in range(3):
            r.append(("ds", "ds_read_b128 %s, v%d offset:%d" % (
                v4(cf + (t * 3 + ks) * 4), vCR, off + t * 3072 + 64 * ks), tag))
    return r


def p_reads(off, tag):
    r = []
    for t in range(3):
        r.append(("ds", "ds_read_b128 %s, v%d offset:%d" % (v4(PV + t * 6), vP, off + 1536 * t), tag))
        r.append(("ds", "ds_read_b64 %s, v%d offset:%d" % (v2(PV + t * 6 + 4), vP2, off + 1536 * t), tag))
    return r


def main():
    hdr = open("cdna_kernels/%s.s.ref" % NAME).read().split("\n")
    for ln in hdr:
        if ln.startswith("; @launch"):
            break
        g.out.append(ln)
    g.out.append("; @launch grid=(256,1,1) block=(256,1,1) lds=%d" % LDS_TOTAL)
    g.out.append('.amdgcn_target "amdgcn-amd-amdhsa--gfx950"')
    g.out.append(".text")
    g.out.append(".globl %s_kernel" % NAME)
    g.out.append(".p2align 8")
    g.out.append(".type %s_kernel,@function" % NAME)
    g.label("%s_kernel" % NAME)

    e("s_cmp_ge_u32 s2, 256")
    e("s_cbranch_scc1 L_end")
    e("s_load_dwordx8 s[40:47], s[0:1], 0")
    e("s_load_dwordx2 s[48:49], s[0:1], 32")
    stamp()
    vL, vN, vQ, vT0, vT1, vT2, vT3, vT4 = 244, 245, 246, 247, 248, 249, 250, 251
    CF2 = 12
    HCF, HPV = 48, 60
    vHc, vHp, vHp2, vHw, vHw2 = 66, 67, 68, 69, 70
    LACC2 = 244
    e("v_and_b32 v%d, 63, v0" % vL)
    e("v_lshrrev_b32 v%d, 6, v0" % vT0)
    e("v_and_b32 v%d, 15, v%d" % (vN, vL))
    e("v_lshrrev_b32 v%d, 4, v%d" % (vQ, vL))
    e("v_readfirstlane_b32 s%d, v%d" % (sW, vT0))
    e("v_lshlrev_b32 v%d, 4, v%d" % (vD, vL))
    e("s_nop 2")
    e("s_and_b32 s%d, s%d, 1" % (sH, sW))
    e("s_lshr_b32 s%d, s%d, 1" % (sS, sW))
    e("s_lshr_b32 s%d, s2, 3" % sBY)
    e("s_and_b32 s%d, s2, 7" % sBX)
    e("s_mul_i32 s%d, s%d, 12" % (sY0, sBY))
    e("s_mul_i32 s%d, s%d, 9216" % (sT[0], sBX))
    e("s_mul_i32 s%d, s%d, 96" % (sT[1], sH))
    e("s_mul_i32 s%d, s%d, %d" % (sT[2], sS, ROWB))
    e("s_mul_i32 s%d, s%d, 4608" % (sT[3], sBX))
    e("s_mul_i32 s%d, s%d, 4608" % (sGoW, sW))
    e("s_mul_i32 s%d, s%d, 4608" % (sLoW, sH))
    e("s_add_u32 s%d, s%d, s%d" % (sLoW, sLoW, sT[2]))
    e("s_add_u32 s%d, s%d, 192" % (sLoW, sLoW))
    e("s_lshl_b32 s%d, s%d, 10" % (sPw1, sW))
    e("s_lshl_b32 s%d, s%d, 7" % (sPw2, sW))
    e("s_add_u32 s%d, s%d, 4096" % (sPw2, sPw2))
    e("s_waitcnt lgkmcnt(0)")
    srd(S_CF, 40, 28311552)
    srd(S_P, 42, 7077888)
    srd(S_WL, 44, 18432)
    srd(S_W, 46, 165888)
    srd(S_O, 48, 28311552)
    flip_src = "s_and_b32 s%d, s%d, 1" % (sF, sBY)
    if "noflip" in EXP:
        flip_src = "s_mov_b32 s%d, 0" % sF
    e(flip_src)
    e("s_mul_i32 s%d, s%d, 110592" % (sFlW, sF))
    e("s_lshl_b32 s%d, s%d, 1" % (sDir, sF))
    e("s_sub_u32 s%d, 1, s%d" % (sDir, sDir))
    e("s_mul_i32 s%d, s%d, 13" % (sYb, sF))
    e("s_add_u32 s%d, s%d, s%d" % (sYb, sYb, sY0))
    e("s_sub_u32 s%d, s%d, 1" % (sYb, sYb))
    e("s_mul_i32 s%d, s%d, %d" % (sDirR, sDir, 2 * 73728))
    e("s_mul_i32 s%d, s%d, 36864" % (sDirP, sDir))
    e("s_mul_i32 s%d, s%d, s%d" % (sT[4], sDir, sS))
    e("s_add_u32 s%d, s%d, s%d" % (sT[4], sT[4], sYb))
    e("s_mul_i32 s%d, s%d, 73728" % (sCFd, sT[4]))
    e("s_mul_i32 s%d, s%d, 4608" % (sT[5], sH))
    e("s_add_u32 s%d, s%d, s%d" % (sCFd, sCFd, sT[5]))
    e("s_add_u32 s%d, s%d, s%d" % (sCFd, sCFd, sT[0]))
    e("s_mov_b32 s%d, 0" % sRow)
    e("s_mul_i32 s%d, s%d, 6" % (sT[5], sBY))
    e("s_mul_i32 s%d, s%d, 7" % (sT[6], sF))
    e("s_add_u32 s%d, s%d, s%d" % (sT[5], sT[5], sT[6]))
    e("s_sub_u32 s%d, s%d, 1" % (sT[5], sT[5]))
    e("s_mul_i32 s%d, s%d, 36864" % (sPg, sT[5]))
    e("s_add_u32 s%d, s%d, s%d" % (sPg, sPg, sT[3]))
    e("s_mov_b32 s%d, %d" % (sPl, PS0))
    e("s_add_u32 s%d, s%d, s%d" % (sT[6], sT[4], sDir))
    e("s_mul_i32 s%d, s%d, 73728" % (sO[0], sT[6]))
    e("s_add_u32 s%d, s%d, 3072" % (sO[1], sO[0]))
    e("s_add_u32 s%d, s%d, 6144" % (sO[2], sO[0]))
    e("s_sub_u32 s%d, s%d, s%d" % (sO[2], sO[2], sDirR))

    e("v_mul_u32_u24 v%d, 192, v%d" % (vT0, vN))
    e("v_lshl_add_u32 v%d, v%d, 4, v%d" % (vT1, vQ, vT0))
    e("v_add_u32 v%d, s%d, v%d" % (vO, sT[0], vT1))
    e("v_add_u32 v%d, s%d, v%d" % (vO, sT[1], vO))
    e("v_add_u32 v%d, s%d, v%d" % (vCR, sT[2], vT1))
    e("v_add_u32 v%d, 192, v%d" % (vCR, vCR))
    e("v_lshrrev_b32 v%d, 1, v%d" % (vT1, vN))
    e("v_mul_u32_u24 v%d, 192, v%d" % (vT1, vT1))
    e("s_mul_i32 s%d, s%d, 4608" % (sT[5], sS))
    e("s_add_u32 s%d, s%d, %d" % (sT[5], sT[5], PS0))
    e("s_add_u32 s%d, s%d, s%d" % (sT[5], sT[5], sT[1]))
    e("v_add_u32 v%d, s%d, v%d" % (vT1, sT[5], vT1))
    e("v_lshl_add_u32 v%d, v%d, 4, v%d" % (vP, vQ, vT1))
    e("v_lshl_add_u32 v%d, v%d, 3, v%d" % (vP2, vQ, vT1))
    e("v_add_u32 v%d, 64, v%d" % (vP2, vP2))
    e("s_mul_i32 s%d, s%d, 48" % (sT[4], sBX))
    e("s_mul_i32 s%d, s%d, 49" % (sT[5], sS))
    e("s_add_u32 s%d, s%d, s%d" % (sT[4], sT[4], sT[5]))
    e("s_sub_u32 s%d, s%d, 1" % (sT[4], sT[4]))
    e("v_mul_lo_u32 v%d, v%d, s%d" % (vT1, vN, sDir))
    e("v_add_u32 v%d, s%d, v%d" % (vT1, sYb, vT1))
    e("v_cmp_gt_u32 vcc, 0x180, v%d" % vT1)
    e("v_cmp_gt_u32 s[44:45], 14, v%d" % vN)
    e("s_and_b64 vcc, vcc, s[44:45]")
    e("s_cmp_lt_u32 s%d, 384" % sT[4])
    e("s_cselect_b64 s[46:47], -1, 0")
    e("s_and_b64 vcc, vcc, s[46:47]")
    e("v_mul_u32_u24 v%d, 384, v%d" % (vT2, vT1))
    e("v_add_u32 v%d, s%d, v%d" % (vT2, sT[4], vT2))
    e("v_mul_u32_u24 v%d, 192, v%d" % (vT2, vT2))
    e("v_lshl_add_u32 v%d, v%d, 4, v%d" % (vT2, vQ, vT2))
    e("v_mov_b32 v%d, 0x%x" % (vT3, OOB))
    e("v_cndmask_b32 v%d, v%d, v%d, vcc" % (vHc, vT3, vT2))
    e("v_lshrrev_b32 v%d, 1, v%d" % (vT2, vT1))
    e("v_mul_u32_u24 v%d, 192, v%d" % (vT2, vT2))
    e("s_lshr_b32 s%d, s%d, 1" % (sT[5], sT[4]))
    e("v_add_u32 v%d, s%d, v%d" % (vT2, sT[5], vT2))
    e("v_mul_u32_u24 v%d, 192, v%d" % (vT2, vT2))
    e("v_add_u32 v%d, s%d, v%d" % (vT2, sT[1], vT2))
    e("v_lshl_add_u32 v%d, v%d, 4, v%d" % (vT4, vQ, vT2))
    e("v_cndmask_b32 v%d, v%d, v%d, vcc" % (vHp, vT3, vT4))
    e("v_lshl_add_u32 v%d, v%d, 3, v%d" % (vT4, vQ, vT2))
    e("v_add_u32 v%d, 64, v%d" % (vT4, vT4))
    e("v_cndmask_b32 v%d, v%d, v%d, vcc" % (vHp2, vT3, vT4))
    e("v_mul_u32_u24 v%d, %d, v%d" % (vT2, ROWB, vN))
    e("s_mul_i32 s%d, s%d, %d" % (sT[5], sS, 49 * 192))
    e("v_add_u32 v%d, s%d, v%d" % (vT2, sT[5], vT2))
    e("v_mov_b32 v%d, 0x%x" % (vT3, DUMMY))
    e("v_cndmask_b32 v%d, v%d, v%d, s[44:45]" % (vT2, vT3, vT2))
    e("v_add_u32 v%d, s%d, v%d" % (vT2, sT[1], vT2))
    e("v_lshl_add_u32 v%d, v%d, 4, v%d" % (vHw, vQ, vT2))
    e("v_lshl_add_u32 v%d, v%d, 3, v%d" % (vHw2, vQ, vT2))
    e("v_add_u32 v%d, 64, v%d" % (vHw2, vHw2))
    for d in range(3):
        e("v_add_u32 v%d, %d, v%d" % (vT1, d, vN))
        e("v_bfe_u32 v%d, v%d, 2, 1" % (vT2, vT1))
        e("v_lshlrev_b32 v%d, 5, v%d" % (vT2, vT2))
        e("v_lshlrev_b32 v%d, 4, v%d" % (vT3, vQ))
        e("v_xor_b32 v%d, v%d, v%d" % (vT2, vT2, vT3))
        e("v_mul_u32_u24 v%d, 192, v%d" % (vT1, vT1))
        e("v_add3_u32 v%d, v%d, v%d, s%d" % (vB[d], vT1, vT2, sT[2]))
    e("v_add_u32 v%d, 1, v%d" % (vT1, vN))
    e("v_bfe_u32 v%d, v%d, 2, 1" % (vT2, vT1))
    e("v_lshlrev_b32 v%d, 5, v%d" % (vT2, vT2))
    e("v_mul_u32_u24 v%d, 192, v%d" % (vT1, vT1))
    e("v_lshlrev_b32 v%d, 4, v%d" % (vT3, vQ))
    e("v_add_u32 v%d, s%d, v%d" % (vT3, sT[1], vT3))
    e("v_xor_b32 v%d, v%d, v%d" % (vT3, vT3, vT2))
    e("v_add3_u32 v%d, v%d, v%d, s%d" % (vWr[0], vT1, vT3, sT[2]))
    e("v_lshlrev_b32 v%d, 3, v%d" % (vT3, vQ))
    e("v_add_u32 v%d, s%d, v%d" % (vT3, sT[1], vT3))
    e("v_add_u32 v%d, 64, v%d" % (vT3, vT3))
    e("v_xor_b32 v%d, v%d, v%d" % (vT3, vT3, vT2))
    e("v_add3_u32 v%d, v%d, v%d, s%d" % (vWr[1], vT1, vT3, sT[2]))
    e("v_lshrrev_b32 v%d, 2, v%d" % (vT1, vN))
    e("v_lshl_add_u32 v%d, v%d, 3, v%d" % (vT1, vQ, vT1))
    e("v_mul_u32_u24 v%d, 192, v%d" % (vT1, vT1))
    e("v_add_u32 v%d, s%d, v%d" % (vT1, sT[1], vT1))
    e("v_add_u32 v%d, 0x%x, v%d" % (vT1, WLROW * ROWB + 192, vT1))
    e("v_and_b32 v%d, 3, v%d" % (vT2, vN))
    e("v_lshl_add_u32 v%d, v%d, 4, v%d" % (vTa, vT2, vT1))
    e("v_lshl_add_u32 v%d, v%d, 3, v%d" % (vTa2, vT2, vT1))
    e("v_add_u32 v%d, 64, v%d" % (vTa2, vTa2))
    e("v_lshrrev_b32 v%d, 1, v%d" % (vT2, vQ))
    e("v_mul_u32_u24 v%d, 384, v%d" % (vT2, vT2))
    e("v_add_u32 v%d, v%d, v%d" % (vTm, vTa, vT2))
    e("v_add_u32 v%d, v%d, v%d" % (vTm2, vTa2, vT2))
    stamp()

    def issue_hbm_first():
        e("s_mov_b32 s%d, s%d" % (sT[6], sCFd))
        e("s_cmp_lt_i32 s%d, 0" % sCFd)
        e("s_cselect_b32 s%d, 0x%x, s%d" % (sCFd, OOB, sCFd))
        run(raw_dma("in0"))
        e("s_mov_b32 s%d, s%d" % (sCFd, sT[6]))
        run(raw_adv())
        e("s_mov_b32 s%d, s%d" % (sT[6], sPg))
        e("s_cmp_lt_i32 s%d, 0" % sPg)
        e("s_cselect_b32 s%d, 0x%x, s%d" % (sPg, OOB, sPg))
        run(p_dma("in0"))
        e("s_mov_b32 s%d, s%d" % (sPg, sT[6]))
        run(p_adv())
        run(p_dma("in0"))
        run(p_adv())
        for ks in range(3):
            g.vmem("buffer_load_dwordx4 %s, v%d, s[%d:%d], 0 offen offset:%d" % (
                v4(HCF + 4 * ks), vHc, S_CF, S_CF + 3, 64 * ks), "in0")
        g.vmem("buffer_load_dwordx4 %s, v%d, s[%d:%d], 0 offen" % (v4(HPV), vHp, S_P, S_P + 3), "in0")
        g.vmem("buffer_load_dwordx2 %s, v%d, s[%d:%d], 0 offen" % (v2(HPV + 4), vHp2, S_P, S_P + 3), "in0")
        run(raw_dma("in0"))
        run(raw_adv())
        run(p_dma("in0"))
        run(p_adv())

    def issue_unit(tag):
        run(raw_dma(tag))
        run(raw_adv())
        run(p_dma(tag))
        run(p_adv())

    def bar():
        e("s_barrier")

    def prologue_lateral():
        tiles = []
        for t in range(3):
            tiles.append((CF + t * 12, PV + t * 6, vWr, t * 3072))
        tiles.append((HCF, HPV, [vHw, vHw2], 0))
        for t in range(3):
            tiles.append((CF2 + t * 12, PV + t * 6, vWr, 2 * ROWB + t * 3072))
        accs = [LACC, LACC2]

        def fin_items(i):
            cf, pv, wa, wo = tiles[i]
            a = accs[i % 2]
            r = pack_items(a)
            r.append(("ds", "ds_write_b128 v%d, %s offset:%d" % (wa[0], v4(a), wo), "w"))
            r.append(("ds", "ds_write_b64 v%d, %s offset:%d" % (wa[1], v2(a + 8), wo), "w"))
            return r

        for s_ in lat_init(accs[0], tiles[0][1]):
            e(s_)
        e("s_nop 1")
        for i in range(len(tiles)):
            cf, pv, wa, wo = tiles[i]
            acc = accs[i % 2]
            side = fin_items(i - 1) if i > 0 else []
            side2 = []
            if i + 1 < len(tiles):
                if i + 1 == 4:
                    side2.append(("wlg", None, "pu1"))
                side2 += [("i", s_, None) for s_ in lat_init(accs[(i + 1) % 2], tiles[i + 1][1])]
            k = 0
            for ks in range(3):
                for mt in range(3):
                    e(lat_mfma(acc, cf, ks, mt))
                    k += 1
                    if k == 5:
                        e("s_nop 2")
                        run(side)
            if i == 2:
                run(p_reads(4608, "pu1"))
            run(side2)
            e("s_nop 1")
        e("s_nop 7")
        run(fin_items(len(tiles) - 1))

    def front():
        trrow[0] = WLROW
        run(w_dma(S_WL, WLROW, None, "wl"))
        issue_hbm_first()
        for tau in range(4):
            run(w_dma(S_W, TAPROW[tau], tau, "t%d" % tau))
        stamp(2)
        g.wait(vm="in0")
        bar()
        stamp(3)
        run(raw_reads(CF, 0, "rr"))
        run(p_reads(0, "rr"))
        read_wl()
        run(raw_reads(CF2, 2 * ROWB, "rr"))
        g.wait(lg="rr")
        bar()
        issue_unit("u2")
        prologue_lateral()
        stamp(4)
        g.wait(vm="t0", lg="w")
        bar()
        read_tap(0)
        stamp(5)

    front()

    for x in vWr + [vCR]:
        e("v_add_u32 v%d, %d, v%d" % (x, 4 * ROWB, x))
    e("v_add_u32 v%d, %d, v%d" % (vP, 2 * 4608, vP))
    e("v_add_u32 v%d, %d, v%d" % (vP2, 2 * 4608, vP2))
    e("s_add_u32 s%d, s%d, 2" % (sPi, sS))
    e("s_add_u32 s%d, s%d, s%d" % (sO[2], sO[2], sDirR))

    def slot_tk(sig, kouter):
        return (sig % 3, sig // 3) if kouter else (sig // 27, sig % 27)

    def bread(sig, bias, kouter=False):
        t, kap = slot_tk(sig, kouter)
        tau, ks = kap // 3, kap % 3
        di, dj = tau // 3, tau % 3
        off = di * ROWB + t * 3072 + 64 * ks + bias
        return "ds_read_b128 %s, v%d offset:%d" % (v4(BBUF[sig % 9]), vB[dj], off)

    for sig in range(LEAD):
        g.ds(bread(sig, 0, True), "B%d" % sig)

    def drain_items(t, part, so=None):
        a = ACC + t * 12
        p = pack_items(a)
        so = sO[t] if so is None else so
        if "nost" in EXP:
            return p[:4] if part == 0 else p[4:]
        if part == 0:
            return p[:4] + [("vm", "buffer_store_dwordx4 %s, v%d, s[%d:%d], s%d offen" % (
                v4(a), vO, S_O, S_O + 3, so), "st")]
        return p[4:] + [("vm", "buffer_store_dwordx2 %s, v%d, s[%d:%d], s%d offen" % (
            v2(a + 8), vO2, S_O, S_O + 3, so), "st")]

    def adv_o(t):
        return [("i", "s_add_u32 s%d, s%d, s%d" % (sO[t], sO[t], sDirR), None)]

    def step(first, lateral, last):
        kouter = first
        pre = defaultdict(list)
        mid = defaultdict(list)
        LB = [12, 34, 56]
        comp = False
        post = []
        if not first:
            for t in range(3):
                tp = (t + 2) % 3
                d0 = drain_items(tp, 0)
                mid[27 * t + 3] += d0[:2]
                mid[27 * t + 4] += d0[2:]
                mid[27 * t + 10] += drain_items(tp, 1)
                mid[27 * t + 11] += adv_o(tp)
            if lateral:
                rr = raw_reads(CF, 0, "rr") + p_reads(0, "rr")
                for i, it in enumerate(rr):
                    mid[2 + i // 3].append(it)
                pre[8].append(("wlg", None, "rr"))
                pre[8].append(("i", "s_barrier", None))
                mid[8].append(("i", "s_cmp_ge_u32 s%d, 3" % sLoop, None))
                mid[8].append(("i", "s_cselect_b32 s%d, 0x%x, s%d" % (sCFd, OOB, sCFd), None))
                mid[8].append(("i", "s_cselect_b32 s%d, 0x%x, s%d" % (sRow, LDS_DROP, sRow), None))
                mid[8].append(("i", "s_cselect_b32 s%d, 0x%x, s%d" % (sPg, OOB, sPg), None))
                mid[8].append(("i", "s_cselect_b32 s%d, 0x%x, s%d" % (sPl, LDS_DROP, sPl), None))
                dm = raw_dma("u")
                mid[9] += dm[:4]
                mid[10] += dm[4:]
                mid[11] += raw_adv()
                dm = p_dma("u")
                mid[12] += dm[:3]
                mid[13] += dm[3:]
                mid[14] += p_adv()
        else:
            comp = True
            LB = [38, 50, 62]
            rr = raw_reads(CF, 0, "rr") + p_reads(0, "rr")
            for i, it in enumerate(rr):
                mid[28 + i // 2].append(it)
            dm = raw_dma("u")
            mid[48] += dm[:4]
            mid[49] += dm[4:]
            mid[50] += raw_adv()
            dm = p_dma("u")
            mid[51] += dm[:3]
            mid[52] += dm[3:]
            mid[53] += p_adv()
            for tau in range(1, 9):
                p = 9 * (tau - 1) + 1
                pre[p].append(("wvm", None, "t%d" % tau))
                if tau == 4:
                    pre[p].append(("wvm", None, "u2"))
                if tau == 5:
                    pre[p].append(("wlg", None, "rr"))
                pre[p].append(("i", "s_barrier", None))
                pre[p] += tr_goto(TAPROW[tau])
                tr = tr_items(lambda ks, mt, half, tau=tau: wreg_half((tau * 3 + ks) * 3 + mt, half), "wf%d" % tau)
                for i, it in enumerate(tr):
                    mid[p + i // 3].append(it)
                if tau in TAP_ISSUE:
                    nt = TAP_ISSUE[tau]
                    dm = w_dma(S_W, TAPROW[nt], nt, "t%d" % nt)
                    mid[p] = dm[:5] + mid[p]
                    mid[p + 1] = dm[5:] + mid[p + 1]
            pre[0].append(("wlg", None, "wf"))
            for tau in range(1, 9):
                pre[9 * tau].append(("wlg", None, "wf%d" % tau))
        if lateral:
            for t in range(3):
                b = LB[t]
                init = lat_init(LACC, PV + t * 6)
                ni, nm = (6, 2) if comp else (4, 1)
                for i, s_ in enumerate(init):
                    mid[b + i // ni].append(("i", s_, None))
                b1 = b + 12 // ni
                k = 0
                for ks in range(3):
                    for mt in range(3):
                        mid[b1 + k // nm].append(("lm", lat_mfma(LACC, CF + t * 12, ks, mt), None))
                        k += 1
                b2 = b1 + (8 // nm) + 3
                pk = pack_items(LACC)
                mid[b2] += pk[:4]
                mid[b2 + 1].append(("ds", "ds_write_b128 v%d, %s offset:%d" % (vWr[0], v4(LACC), t * 3072), "w"))
                mid[b2 + 1] += pk[4:]
                mid[b2 + 2].append(("ds", "ds_write_b64 v%d, %s offset:%d" % (vWr[1], v2(LACC + 8), t * 3072), "w"))
            post = [("i", "v_add_u32 v%d, %d, v%d" % (x, 2 * ROWB, x), None) for x in vWr + [vCR]]
            mid[76] += [("i", "s_mov_b32 s%d, 4608" % sT[5], None),
                        ("i", "s_add_u32 s%d, s%d, 1" % (sPi, sPi), None),
                        ("i", "s_cmp_eq_u32 s%d, 6" % sPi, None),
                        ("i", "s_cselect_b32 s%d, 0x%x, s%d" % (sT[5], (-5 * 4608) & 0xffffffff, sT[5]), None)]
            mid[78] += [("i", "v_add_u32 v%d, s%d, v%d" % (vP, sT[5], vP), None),
                        ("i", "v_add_u32 v%d, s%d, v%d" % (vP2, sT[5], vP2), None)]
        for sig in range(81):
            t, kap = slot_tk(sig, kouter)
            if "inloop" in EXP and (not first) and lateral and sig in (0, 2, 8, 9, 15, 27, 34, 54, 56, 73, 80):
                stamp(10 + (0, 2, 8, 9, 15, 27, 34, 54, 56, 73, 80).index(sig))
            run(pre[sig])
            g.wait(lg="B%d" % (sig % 9))
            items = [x for x in mid[sig] if x[0] != "lm"]
            lms = [x for x in mid[sig] if x[0] == "lm"]
            per = (len(items) + 2) // 3
            for mt in range(3):
                a = ACC + (t * 3 + mt) * 4
                c = "0" if kap == 0 else v4(a)
                e("v_mfma_f32_16x16x32_bf16 %s, %s, %s, %s" % (v4(a), wreg(kap * 3 + mt), v4(BBUF[sig % 9]), c))
                run(items[mt * per:(mt + 1) * per])
            for x in lms:
                e(x[1])
            nxt = sig + LEAD
            if nxt == 9 and not first:
                g.wait(lg="w", vm="u" if lateral else None, oldest=True)
                e("s_barrier")
            if nxt < 81:
                g.ds(bread(nxt, 0, kouter), "B%d" % (nxt % 9))
            elif not last:
                g.ds(bread(nxt - 81, 2 * ROWB), "B%d" % (nxt % 9))
        run(post)
        if not last:
            for d in range(3):
                e("v_add_u32 v%d, %d, v%d" % (vB[d], 2 * ROWB, vB[d]))
        if first:
            e("v_sub_u32 v%d, v%d, v%d" % (vTa, vP2, vP))
            e("v_add_u32 v%d, v%d, v%d" % (vO2, vO, vTa))
            for t in range(2):
                run(drain_items(t, 0))
                run(drain_items(t, 1))
                run(adv_o(t))

    step(first=True, lateral=True, last=False)
    stamp(6)
    e("s_mov_b32 s%d, 0" % sLoop)
    g.label("L_loop")
    base = len(g.out)
    bodies = []
    n = 0
    while True:
        st_in = (list(g.lg), list(g.vm))
        del g.out[base:]
        step(first=False, lateral=True, last=False)
        bodies.append(g.out[base:])
        n += 1
        if (g.lg, g.vm) == st_in:
            break
        assert n < 8
    for other in bodies[:-1]:
        assert len(other) == len(bodies[-1])
        for a, b in zip(other, bodies[-1]):
            if isinstance(a, Wait):
                b.merge(a)
            else:
                assert a == b
    e("s_add_u32 s%d, s%d, 1" % (sLoop, sLoop))
    e("s_cmp_lt_u32 s%d, 4" % sLoop)
    e("s_cbranch_scc1 L_loop")
    stamp(7)
    step(first=False, lateral=False, last=True)
    e("s_nop 7")
    run(drain_items(2, 0))
    run(drain_items(2, 1))
    if STAMPS:
        stamp(8)
        g.drain(vm=True)
        stamp(9)
        e("s_load_dwordx2 s[40:41], s[0:1], 48")
        e("s_waitcnt lgkmcnt(0)")
        srd(S_CF, 40, 268435456)
        e("s_lshl_b32 s%d, s2, 2" % sT[0])
        e("s_add_u32 s%d, s%d, s%d" % (sT[0], sT[0], sW))
        e("s_lshl_b32 s%d, s%d, 7" % (sT[0], sT[0]))
        e("v_mov_b32 v1, 0")
        for i in range(nst[0]):
            e("v_mov_b32 v2, s%d" % (ST0 + i))
            e("buffer_store_dword v2, v1, s[%d:%d], s%d offen offset:%d" % (S_CF, S_CF + 3, sT[0], 4 * i))
        print("stamps:", nst[0])
    g.label("L_end")
    e("s_endpgm")
    g.out.append('.section .rodata,"a"')
    g.out.append(".p2align 6")
    g.out.append(".amdhsa_kernel %s_kernel" % NAME)
    g.out.append("  .amdhsa_next_free_vgpr 512")
    g.out.append("  .amdhsa_next_free_sgpr 102")
    g.out.append("  .amdhsa_accum_offset 256")
    g.out.append("  .amdhsa_group_segment_fixed_size 0")
    g.out.append("  .amdhsa_kernarg_size 56")
    g.out.append("  .amdhsa_user_sgpr_count 2")
    g.out.append("  .amdhsa_user_sgpr_kernarg_segment_ptr 1")
    g.out.append("  .amdhsa_system_sgpr_workgroup_id_x 1")
    g.out.append(".end_amdhsa_kernel")
    outp = sys.argv[1] if len(sys.argv) > 1 else "cdna_kernels/%s.s" % NAME
    open(outp, "w").write(g.text())
    print("wrote", outp)


main()
```

```python
import sys, os
from collections import defaultdict

NAME = "standalone__detection_seg_fpn_lateral__vision"

ROWB = 9600
DUMMY = 16 * ROWB
LDS_TOTAL = 163840
OOB = 0x40000000
TAPROW = [4, 6, 8, 10, 12, 14, 8, 10, 12]
WLROW = 14

S_CF, S_P, S_WL, S_W, S_O = 4, 8, 12, 16, 20
sW, sH, sS, sBY, sBX, sY0 = 24, 25, 26, 27, 28, 29
sCFd = 30
sRow = 31
sP = 33
sO = [34, 35, 36]
sLoop = 37
sT = [38, 39, 50, 51, 52, 53, 54, 55]
sLoW, sGoW = 60, 61
ST0 = 64

vD = 1
vO2 = 2
vCR, vP, vO = 3, 4, 5
vB = [6, 7, 8]
vWr = [9, 10]
vP2 = 11
vTa2, vTm2 = 0, 2
ACC = 12
BBUF = [48, 52, 56, 60, 64, 68, 244, 248, 252]
LACC = 72
CF = 84
PV = 120
vTa, vTm = 138, 139
WL = 140
WV = 176
LEAD = 8

STAMPS = int(os.environ.get("STAMPS", "0"))
EXP = os.environ.get("EXP", "")


def wreg(f):
    if f < 64:
        return "a[%d:%d]" % (4 * f, 4 * f + 3)
    r = WV + 4 * (f - 64)
    return "v[%d:%d]" % (r, r + 3)


def wreg_half(f, half):
    if f < 64:
        r = 4 * f + 2 * half
        return "a[%d:%d]" % (r, r + 1)
    r = WV + 4 * (f - 64) + 2 * half
    return "v[%d:%d]" % (r, r + 1)


def v4(r):
    return "v[%d:%d]" % (r, r + 3)


def v2(r):
    return "v[%d:%d]" % (r, r + 1)


class Wait:
    def __init__(self, vm, lg):
        self.vm, self.lg = vm, lg

    def merge(self, o):
        f = lambda a, b: b if a is None else (a if b is None else min(a, b))
        self.vm, self.lg = f(self.vm, o.vm), f(self.lg, o.lg)

    def text(self):
        parts = []
        if self.vm is not None:
            parts.append("vmcnt(%d)" % self.vm)
        if self.lg is not None:
            parts.append("lgkmcnt(%d)" % self.lg)
        return ("    s_waitcnt " + " ".join(parts)) if parts else None


class Gen:
    def __init__(self):
        self.out = []
        self.lg = []
        self.vm = []

    def e(self, s):
        self.out.append("    " + s)

    def label(self, s):
        self.out.append(s + ":")

    def ds(self, s, tag=None):
        self.e(s)
        self.lg.append(tag)

    def vmem(self, s, tag=None):
        self.e(s)
        self.vm.append(tag)

    def _need(self, q, tag, mx):
        if tag is None or tag not in q:
            return None
        idx = len(q) - 1 - q[::-1].index(tag)
        n = len(q) - 1 - idx
        n = min(n, mx)
        del q[: len(q) - n]
        return n

    def wait(self, lg=None, vm=None):
        self.out.append(Wait(self._need(self.vm, vm, 63), self._need(self.lg, lg, 15)))

    def drain(self, lg=False, vm=False):
        self.out.append(Wait(0 if vm else None, 0 if lg else None))
        if vm:
            self.vm = []
        if lg:
            self.lg = []

    def text(self):
        r = []
        for x in self.out:
            if isinstance(x, Wait):
                t = x.text()
                if t:
                    r.append(t)
            else:
                r.append(x)
        return "\n".join(r) + "\n"


g = Gen()
e = g.e
nst = [0]


def stamp():
    if not STAMPS:
        return
    i = nst[0]
    nst[0] += 1
    e("s_memtime s[100:101]")
    e("s_waitcnt lgkmcnt(0)")
    e("s_mov_b32 s%d, s100" % (ST0 + i))


def srd(d, ptr, nbytes):
    e("s_mov_b32 s%d, s%d" % (d, ptr))
    e("s_and_b32 s%d, s%d, 0xffff" % (d + 1, ptr + 1))
    e("s_mov_b32 s%d, 0x%x" % (d + 2, nbytes))
    e("s_mov_b32 s%d, 0x00020000" % (d + 3))


def lat_init(acc, pv):
    r = []
    for mt in range(3):
        a = acc + 4 * mt
        p = pv + 2 * mt
        r.append("v_lshlrev_b32 v%d, 16, v%d" % (a, p))
        r.append("v_and_b32 v%d, 0xffff0000, v%d" % (a + 1, p))
        r.append("v_lshlrev_b32 v%d, 16, v%d" % (a + 2, p + 1))
        r.append("v_and_b32 v%d, 0xffff0000, v%d" % (a + 3, p + 1))
    return r


def lat_mfma(acc, cf, ks, mt):
    a = acc + 4 * mt
    return "v_mfma_f32_16x16x32_bf16 %s, %s, %s, %s" % (
        v4(a), v4(WL + (ks * 3 + mt) * 4), v4(cf + 4 * ks), v4(a))


def run(items):
    for kind, s, tag in items:
        if kind == "vm":
            g.vmem(s, tag)
        elif kind == "vmx":
            e("s_mov_b64 exec, 0xffffffff")
            g.vmem(s, tag)
            e("s_mov_b64 exec, -1")
        elif kind == "ds":
            g.ds(s, tag)
        elif kind == "wvm":
            g.wait(vm=tag)
        elif kind == "wlg":
            g.wait(lg=tag)
        else:
            e(s)


def dma_items(srd_reg, row, gbase, tag):
    r = []
    r.append(("i", "s_add_u32 m0, s%d, %d" % (sLoW, row * ROWB), None))
    r.append(("i", "s_add_u32 s%d, s%d, %d" % (sT[7], sGoW, gbase), None))
    for k in range(4):
        r.append(("vm", "buffer_load_dwordx4 v%d, s[%d:%d], s%d offen offset:%d lds" % (
            vD, srd_reg, srd_reg + 3, sT[7], 1024 * k), tag))
    r.append(("i", "s_add_u32 m0, s%d, %d" % (sLoW, row * ROWB + 4096), None))
    r.append(("i", "s_add_u32 s%d, s%d, %d" % (sT[7], sGoW, gbase + 4096), None))
    r.append(("vmx", "buffer_load_dwordx4 v%d, s[%d:%d], s%d offen lds" % (vD, srd_reg, srd_reg + 3, sT[7]), tag))
    return r


def raw_dma_items(row_imm, use_srow, sg, tag):
    r = []
    if use_srow:
        r.append(("i", "s_add_u32 m0, s%d, s%d" % (sLoW, sRow), None))
    else:
        r.append(("i", "s_add_u32 m0, s%d, %d" % (sLoW, row_imm * ROWB), None))
    r.append(("i", "s_nop 0", None))
    for k in range(4):
        r.append(("vm", "buffer_load_dwordx4 v%d, s[%d:%d], s%d offen offset:%d lds" % (
            vD, S_CF, S_CF + 3, sg, 1024 * k), tag))
    r.append(("i", "s_add_u32 m0, m0, 4096", None))
    r.append(("i", "s_add_u32 s%d, s%d, 4096" % (sT[7], sg), None))
    r.append(("vmx", "buffer_load_dwordx4 v%d, s[%d:%d], s%d offen lds" % (vD, S_CF, S_CF + 3, sT[7]), tag))
    return r


def tr_items(regfn, tag):
    r = []
    for ks in range(3):
        for mt in range(3):
            for half in range(2):
                co = 8 * mt if mt < 2 else 0
                if ks == 0:
                    a, o = (vTa if mt < 2 else vTa2), 768 * half + co
                elif ks == 1:
                    a, o = (vTm if mt < 2 else vTm2), 6144 + 768 * half + co
                else:
                    a, o = (vTa if mt < 2 else vTa2), ROWB + 3072 + 768 * half + co
                r.append(("ds", "ds_read_b64_tr_b16 %s, v%d offset:%d" % (regfn(ks, mt, half), a, o), tag))
    return r


def tr_move(d):
    return [("i", "v_add_u32 v%d, 0x%x, v%d" % (x, d & 0xffffffff, x), None) for x in (vTa, vTm, vTa2, vTm2)]


def pack_items(a):
    return [("i", "v_cvt_pk_bf16_f32 v%d, v%d, v%d" % (a, a, a + 1), None),
            ("i", "v_cvt_pk_bf16_f32 v%d, v%d, v%d" % (a + 1, a + 2, a + 3), None),
            ("i", "v_cvt_pk_bf16_f32 v%d, v%d, v%d" % (a + 2, a + 4, a + 5), None),
            ("i", "v_cvt_pk_bf16_f32 v%d, v%d, v%d" % (a + 3, a + 6, a + 7), None),
            ("i", "v_cvt_pk_bf16_f32 v%d, v%d, v%d" % (a + 8, a + 8, a + 9), None),
            ("i", "v_cvt_pk_bf16_f32 v%d, v%d, v%d" % (a + 9, a + 10, a + 11), None)]


def main():
    hdr = open("cdna_kernels/%s.s.ref" % NAME).read().split("\n")
    for ln in hdr:
        if ln.startswith("; @launch"):
            break
        g.out.append(ln)
    g.out.append("; @launch grid=(256,1,1) block=(256,1,1) lds=%d" % LDS_TOTAL)
    g.out.append('.amdgcn_target "amdgcn-amd-amdhsa--gfx950"')
    g.out.append(".text")
    g.out.append(".globl %s_kernel" % NAME)
    g.out.append(".p2align 8")
    g.out.append(".type %s_kernel,@function" % NAME)
    g.label("%s_kernel" % NAME)

    e("s_cmp_ge_u32 s2, 256")
    e("s_cbranch_scc1 L_end")
    e("s_load_dwordx8 s[40:47], s[0:1], 0")
    e("s_load_dwordx2 s[48:49], s[0:1], 32")
    stamp()
    vL, vN, vQ, vT0, vT1, vT2, vT3, vT4 = 244, 245, 246, 247, 248, 249, 250, 251
    e("v_and_b32 v%d, 63, v0" % vL)
    e("v_lshrrev_b32 v%d, 6, v0" % vT0)
    e("v_and_b32 v%d, 15, v%d" % (vN, vL))
    e("v_lshrrev_b32 v%d, 4, v%d" % (vQ, vL))
    e("v_readfirstlane_b32 s%d, v%d" % (sW, vT0))
    e("s_nop 3")
    e("s_and_b32 s%d, s%d, 1" % (sH, sW))
    e("s_lshr_b32 s%d, s%d, 1" % (sS, sW))
    e("s_lshr_b32 s%d, s2, 3" % sBY)
    e("s_and_b32 s%d, s2, 7" % sBX)
    e("s_mul_i32 s%d, s%d, 12" % (sY0, sBY))
    e("s_mul_i32 s%d, s%d, 9216" % (sT[0], sBX))
    e("s_mul_i32 s%d, s%d, 96" % (sT[1], sH))
    e("s_mul_i32 s%d, s%d, %d" % (sT[2], sS, ROWB))
    e("s_mul_i32 s%d, s%d, 4608" % (sT[3], sBX))
    e("s_mul_i32 s%d, s%d, 4608" % (sGoW, sW))
    e("s_mul_i32 s%d, s%d, 4608" % (sLoW, sH))
    e("s_add_u32 s%d, s%d, s%d" % (sLoW, sLoW, sT[2]))
    e("s_add_u32 s%d, s%d, 192" % (sLoW, sLoW))
    e("v_lshlrev_b32 v%d, 4, v%d" % (vD, vL))
    e("v_mul_u32_u24 v%d, 192, v%d" % (vT0, vN))
    e("v_lshl_add_u32 v%d, v%d, 4, v%d" % (vT1, vQ, vT0))
    e("v_add_u32 v%d, s%d, v%d" % (vO, sT[0], vT1))
    e("v_add_u32 v%d, s%d, v%d" % (vO, sT[1], vO))
    e("v_add_u32 v%d, s%d, v%d" % (vCR, sT[2], vT1))
    e("v_add_u32 v%d, 192, v%d" % (vCR, vCR))
    e("v_lshrrev_b32 v%d, 1, v%d" % (vT1, vN))
    e("v_mul_u32_u24 v%d, 192, v%d" % (vT1, vT1))
    e("v_add_u32 v%d, s%d, v%d" % (vT1, sT[3], vT1))
    e("v_add_u32 v%d, s%d, v%d" % (vT1, sT[1], vT1))
    e("v_lshl_add_u32 v%d, v%d, 4, v%d" % (vP, vQ, vT1))
    e("v_lshl_add_u32 v%d, v%d, 3, v%d" % (vP2, vQ, vT1))
    e("v_add_u32 v%d, 64, v%d" % (vP2, vP2))

    e("s_waitcnt lgkmcnt(0)")
    srd(S_CF, 40, 28311552)
    srd(S_P, 42, 7077888)
    srd(S_WL, 44, 18432)
    srd(S_W, 46, 165888)
    srd(S_O, 48, 28311552)

    stamp()
    run(dma_items(S_WL, WLROW, 0, "dmawl"))
    if "fine" in EXP: stamp()

    CF2, PV2 = 12, 48
    HCF, HPV = 176, 188
    vHc, vHp, vHp2, vHw, vHw2 = 194, 195, 196, 197, 198
    LACC2 = 200
    sU1c, sU1p = 56, 57
    e("s_mul_i32 s%d, s%d, 4608" % (sT[7], sH))
    e("s_add_u32 s%d, s%d, s%d" % (sT[7], sT[7], sT[0]))
    e("s_add_u32 s%d, s%d, s%d" % (sT[4], sY0, sS))
    e("s_sub_u32 s%d, s%d, 1" % (sT[4], sT[4]))
    e("s_mul_i32 s%d, s%d, 73728" % (sT[5], sT[4]))
    e("s_add_u32 s%d, s%d, s%d" % (sT[5], sT[5], sT[7]))
    e("s_add_u32 s%d, s%d, %d" % (sU1c, sT[5], 2 * 73728))
    e("s_add_u32 s%d, s%d, %d" % (sCFd, sT[5], 4 * 73728))
    e("s_ashr_i32 s%d, s%d, 1" % (sT[6], sT[4]))
    e("s_mul_i32 s%d, s%d, 36864" % (sT[6], sT[6]))
    e("s_add_u32 s%d, s%d, 36864" % (sU1p, sT[6]))
    e("s_add_u32 s%d, s%d, %d" % (sP, sT[6], 2 * 36864))
    e("s_cmp_lt_i32 s%d, 0" % sT[4])
    e("s_cselect_b32 s%d, 0x%x, s%d" % (sT[5], OOB, sT[5]))
    e("s_cselect_b32 s%d, 0x%x, s%d" % (sT[6], OOB, sT[6]))
    run(raw_dma_items(0, False, sT[5], "raw0"))
    run(raw_dma_items(2, False, sU1c, "raw1"))

    def p_loads(pv, sp, t, tag):
        r = []
        r.append(("vm", "buffer_load_dwordx4 %s, v%d, s[%d:%d], s%d offen offset:%d" % (
            v4(pv + t * 6), vP, S_P, S_P + 3, sp, 1536 * t), tag))
        r.append(("vm", "buffer_load_dwordx2 %s, v%d, s[%d:%d], s%d offen offset:%d" % (
            v2(pv + t * 6 + 4), vP2, S_P, S_P + 3, sp, 1536 * t), tag))
        return r

    def raw_reads(cf, off, tag):
        r = []
        for t in range(3):
            for ks in range(3):
                r.append(("ds", "ds_read_b128 %s, v%d offset:%d" % (
                    v4(cf + (t * 3 + ks) * 4), vCR, off + t * 3072 + 64 * ks), tag))
        return r

    for t in range(3):
        run(p_loads(PV, sT[6], t, "u0%d" % t))

    cnt = 14
    e("s_mul_i32 s%d, s%d, 48" % (sT[4], sBX))
    e("s_mul_i32 s%d, s%d, 49" % (sT[5], sS))
    e("s_add_u32 s%d, s%d, s%d" % (sT[4], sT[4], sT[5]))
    e("s_sub_u32 s%d, s%d, 1" % (sT[4], sT[4]))
    e("s_sub_u32 s%d, s%d, 1" % (sT[6], sY0))
    e("v_add_u32 v%d, s%d, v%d" % (vT1, sT[6], vN))
    e("v_cmp_gt_u32 vcc, 0x180, v%d" % vT1)
    e("v_cmp_gt_u32 s[62:63], %d, v%d" % (cnt, vN))
    e("s_and_b64 vcc, vcc, s[62:63]")
    e("s_cmp_lt_u32 s%d, 384" % sT[4])
    e("s_cselect_b64 s[58:59], -1, 0")
    e("s_and_b64 vcc, vcc, s[58:59]")
    e("v_mul_u32_u24 v%d, 384, v%d" % (vT2, vT1))
    e("v_add_u32 v%d, s%d, v%d" % (vT2, sT[4], vT2))
    e("v_mul_u32_u24 v%d, 192, v%d" % (vT2, vT2))
    e("v_lshl_add_u32 v%d, v%d, 4, v%d" % (vT2, vQ, vT2))
    e("v_mov_b32 v%d, 0x%x" % (vT3, OOB))
    e("v_cndmask_b32 v%d, v%d, v%d, vcc" % (vHc, vT3, vT2))
    e("v_lshrrev_b32 v%d, 1, v%d" % (vT2, vT1))
    e("v_mul_u32_u24 v%d, 192, v%d" % (vT2, vT2))
    e("s_lshr_b32 s%d, s%d, 1" % (sT[5], sT[4]))
    e("v_add_u32 v%d, s%d, v%d" % (vT2, sT[5], vT2))
    e("v_mul_u32_u24 v%d, 192, v%d" % (vT2, vT2))
    e("v_add_u32 v%d, s%d, v%d" % (vT2, sT[1], vT2))
    e("v_lshl_add_u32 v%d, v%d, 4, v%d" % (vT4, vQ, vT2))
    e("v_cndmask_b32 v%d, v%d, v%d, vcc" % (vHp, vT3, vT4))
    e("v_lshl_add_u32 v%d, v%d, 3, v%d" % (vT4, vQ, vT2))
    e("v_add_u32 v%d, 64, v%d" % (vT4, vT4))
    e("v_cndmask_b32 v%d, v%d, v%d, vcc" % (vHp2, vT3, vT4))
    for ks in range(3):
        g.vmem("buffer_load_dwordx4 %s, v%d, s[%d:%d], 0 offen offset:%d" % (
            v4(HCF + 4 * ks), vHc, S_CF, S_CF + 3, 64 * ks), "h")
    g.vmem("buffer_load_dwordx4 %s, v%d, s[%d:%d], 0 offen" % (v4(HPV), vHp, S_P, S_P + 3), "h")
    g.vmem("buffer_load_dwordx2 %s, v%d, s[%d:%d], 0 offen" % (v2(HPV + 4), vHp2, S_P, S_P + 3), "h")
    run(dma_items(S_W, TAPROW[0], 0, "tap0"))
    for t in range(3):
        run(p_loads(PV2, sU1p, t, "u1%d" % t))
    e("v_mul_u32_u24 v%d, %d, v%d" % (vT2, ROWB, vN))
    e("s_mul_i32 s%d, s%d, %d" % (sT[5], sS, 49 * 192))
    e("v_add_u32 v%d, s%d, v%d" % (vT2, sT[5], vT2))
    e("v_mov_b32 v%d, 0x%x" % (vT3, DUMMY))
    e("v_cndmask_b32 v%d, v%d, v%d, s[62:63]" % (vT2, vT3, vT2))
    e("v_add_u32 v%d, s%d, v%d" % (vT2, sT[1], vT2))
    e("v_lshl_add_u32 v%d, v%d, 4, v%d" % (vHw, vQ, vT2))
    e("v_lshl_add_u32 v%d, v%d, 3, v%d" % (vHw2, vQ, vT2))
    e("v_add_u32 v%d, 64, v%d" % (vHw2, vHw2))

    for d in range(3):
        e("v_add_u32 v%d, %d, v%d" % (vT1, d, vN))
        e("v_bfe_u32 v%d, v%d, 2, 1" % (vT2, vT1))
        e("v_lshlrev_b32 v%d, 5, v%d" % (vT2, vT2))
        e("v_lshlrev_b32 v%d, 4, v%d" % (vT3, vQ))
        e("v_xor_b32 v%d, v%d, v%d" % (vT2, vT2, vT3))
        e("v_mul_u32_u24 v%d, 192, v%d" % (vT1, vT1))
        e("v_add3_u32 v%d, v%d, v%d, s%d" % (vB[d], vT1, vT2, sT[2]))
    e("v_add_u32 v%d, 1, v%d" % (vT1, vN))
    e("v_bfe_u32 v%d, v%d, 2, 1" % (vT2, vT1))
    e("v_lshlrev_b32 v%d, 5, v%d" % (vT2, vT2))
    e("v_mul_u32_u24 v%d, 192, v%d" % (vT1, vT1))
    e("v_lshlrev_b32 v%d, 4, v%d" % (vT3, vQ))
    e("v_add_u32 v%d, s%d, v%d" % (vT3, sT[1], vT3))
    e("v_xor_b32 v%d, v%d, v%d" % (vT3, vT3, vT2))
    e("v_add3_u32 v%d, v%d, v%d, s%d" % (vWr[0], vT1, vT3, sT[2]))
    e("v_lshlrev_b32 v%d, 3, v%d" % (vT3, vQ))
    e("v_add_u32 v%d, s%d, v%d" % (vT3, sT[1], vT3))
    e("v_add_u32 v%d, 64, v%d" % (vT3, vT3))
    e("v_xor_b32 v%d, v%d, v%d" % (vT3, vT3, vT2))
    e("v_add3_u32 v%d, v%d, v%d, s%d" % (vWr[1], vT1, vT3, sT[2]))
    e("v_lshrrev_b32 v%d, 2, v%d" % (vT1, vN))
    e("v_lshl_add_u32 v%d, v%d, 3, v%d" % (vT1, vQ, vT1))
    e("v_mul_u32_u24 v%d, 192, v%d" % (vT1, vT1))
    e("v_add_u32 v%d, s%d, v%d" % (vT1, sT[1], vT1))
    e("v_add_u32 v%d, 0x%x, v%d" % (vT1, WLROW * ROWB + 192, vT1))
    e("v_and_b32 v%d, 3, v%d" % (vT2, vN))
    e("v_lshl_add_u32 v%d, v%d, 4, v%d" % (vTa, vT2, vT1))
    e("v_lshl_add_u32 v%d, v%d, 3, v%d" % (vTa2, vT2, vT1))
    e("v_add_u32 v%d, 64, v%d" % (vTa2, vTa2))
    e("v_lshrrev_b32 v%d, 1, v%d" % (vT2, vQ))
    e("v_mul_u32_u24 v%d, 384, v%d" % (vT2, vT2))
    e("v_add_u32 v%d, v%d, v%d" % (vTm, vTa, vT2))
    e("v_add_u32 v%d, v%d, v%d" % (vTm2, vTa2, vT2))

    stamp()
    g.wait(vm="raw1")
    e("s_barrier")
    run(raw_reads(CF, 0, "rr"))
    run(tr_items(lambda ks, mt, half: v2(WL + (ks * 3 + mt) * 4 + 2 * half), "wl"))
    run(raw_reads(CF2, 2 * ROWB, "rr"))
    run(tr_move((TAPROW[0] - WLROW) * ROWB))
    run(dma_items(S_W, TAPROW[1], 1 * 18432, "tap1"))
    g.wait(lg="rr")
    e("s_barrier")
    stamp()

    tiles = []
    for t in range(3):
        tiles.append((CF + t * 12, PV + t * 6, vWr, t * 3072, "u0%d" % t))
    tiles.append((HCF, HPV, [vHw, vHw2], 0, "h"))
    for t in range(3):
        tiles.append((CF2 + t * 12, PV2 + t * 6, vWr, 2 * ROWB + t * 3072, "u1%d" % t))
    accs = [LACC, LACC2]
    extra = defaultdict(list)
    extra[0] = dma_items(S_W, TAPROW[2], 2 * 18432, "tap2")
    extra[2] = dma_items(S_W, TAPROW[3], 3 * 18432, "tap3")
    extra[4] = dma_items(S_W, TAPROW[4], 4 * 18432, "tap4")
    extra[5] = dma_items(S_W, TAPROW[5], 5 * 18432, "tap5")

    def fin_items(i):
        cf, pv, wa, wo, tag = tiles[i]
        a = accs[i % 2]
        r = pack_items(a)
        r.append(("ds", "ds_write_b128 v%d, %s offset:%d" % (wa[0], v4(a), wo), "w"))
        r.append(("ds", "ds_write_b64 v%d, %s offset:%d" % (wa[1], v2(a + 8), wo), "w"))
        return r

    g.wait(vm=tiles[0][4])
    for s_ in lat_init(accs[0], tiles[0][1]):
        e(s_)
    e("s_nop 1")
    for i in range(len(tiles)):
        cf, pv, wa, wo, tag = tiles[i]
        acc = accs[i % 2]
        side = fin_items(i - 1) if i > 0 else []
        side2 = []
        if i + 1 < len(tiles):
            side2.append(("wvm", None, tiles[i + 1][4]))
            side2 += [("i", s_, None) for s_ in lat_init(accs[(i + 1) % 2], tiles[i + 1][1])]
        k = 0
        for ks in range(3):
            for mt in range(3):
                e(lat_mfma(acc, cf, ks, mt))
                k += 1
                if k == 5:
                    e("s_nop 2")
                    run(side)
        run(extra[i])
        run(side2)
        e("s_nop 1")
    e("s_nop 7")
    run(fin_items(len(tiles) - 1))
    stamp()

    g.wait(vm="tap0", lg="w")
    e("s_barrier")
    stamp()
    run(tr_items(lambda ks, mt, half: wreg_half((0 * 3 + ks) * 3 + mt, half), "wf0"))

    e("s_add_u32 s%d, s%d, s%d" % (sT[4], sY0, sS))
    e("s_mul_i32 s%d, s%d, 73728" % (sO[0], sT[4]))
    e("s_add_u32 s%d, s%d, 3072" % (sO[1], sO[0]))
    e("s_add_u32 s%d, s%d, 6144" % (sO[2], sO[0]))
    e("s_mov_b32 s%d, %d" % (sRow, 4 * ROWB))
    for x in vWr + [vCR]:
        e("v_add_u32 v%d, %d, v%d" % (x, 4 * ROWB, x))

    def issue_p_loads(t):
        return p_loads(PV, sP, t, "cf%d" % t)

    def adv_raw():
        return [("i", "s_add_u32 s%d, s%d, %d" % (sCFd, sCFd, 2 * 73728), None),
                ("i", "s_add_u32 s%d, s%d, %d" % (sRow, sRow, 2 * ROWB), None)]

    def adv_p():
        return [("i", "s_add_u32 s%d, s%d, 36864" % (sP, sP), None)]

    def slot_tk(sig, kouter):
        return (sig % 3, sig // 3) if kouter else (sig // 27, sig % 27)

    def bread(sig, kouter, bias):
        t, kap = slot_tk(sig, kouter)
        tau, ks = kap // 3, kap % 3
        di, dj = tau // 3, tau % 3
        off = di * ROWB + t * 3072 + 64 * ks + bias
        return "ds_read_b128 %s, v%d offset:%d" % (v4(BBUF[sig % 9]), vB[dj], off)

    for sig in range(LEAD):
        g.ds(bread(sig, True, 0), "B%d" % (sig % 9))

    def drain_items(t, part):
        a = ACC + t * 12
        p = pack_items(a)
        if part == 0:
            return p[:4] + [("vm", "buffer_store_dwordx4 %s, v%d, s[%d:%d], s%d offen" % (
                v4(a), vO, S_O, S_O + 3, sO[t]), "st")]
        return p[4:] + [("vm", "buffer_store_dwordx2 %s, v%d, s[%d:%d], s%d offen" % (
            v2(a + 8), vO2, S_O, S_O + 3, sO[t]), "st")]

    def adv_o(t):
        return [("i", "s_add_u32 s%d, s%d, %d" % (sO[t], sO[t], 2 * 73728), None)]

    def step(first, lateral, last, loop_oob=False):
        kouter = first
        pre = defaultdict(list)
        mid = defaultdict(list)
        postslot = defaultdict(list)
        LB = [12, 34, 56]
        comp = False
        if not first:
            for t in range(3):
                tp = (t + 2) % 3
                d0 = drain_items(tp, 0)
                mid[27 * t + 3] += d0[:2]
                mid[27 * t + 4] += d0[2:]
                mid[27 * t + 10] += drain_items(tp, 1)
                mid[27 * t + 11] += adv_o(tp)
            if lateral:
                rr = raw_reads(CF, 0, "rr")
                for i, it in enumerate(rr):
                    mid[2 + i // 3].append(it)
                pre[7].append(("wlg", None, "rr"))
                pre[7].append(("i", "s_barrier", None))
                dm = raw_dma_items(0, True, sCFd, "raw")
                mid[7] += dm[:4]
                mid[8] += dm[4:]
                adv = adv_raw()
                if loop_oob:
                    adv.append(("i", "s_cmp_eq_u32 s%d, 2" % sLoop, None))
                    adv.append(("i", "s_cselect_b32 s%d, 0x%x, s%d" % (sCFd, OOB, sCFd), None))
                mid[9] += adv
        else:
            cur = TAPROW[0]
            comp = True
            LB = [38, 50, 62]
            dm = raw_dma_items(0, True, sCFd, "raw")
            mid[2] += dm[:4]
            mid[3] += dm[4:]
            mid[4] += adv_raw()
            for t in range(3):
                mid[5 + t] += issue_p_loads(t)
            mid[8] += adv_p()
            rr = raw_reads(CF, 0, "rr")
            for i, it in enumerate(rr):
                mid[28 + i // 2].append(it)
            dm = raw_dma_items(0, True, sCFd, "rawn")
            mid[47] += dm[:4]
            mid[48] += dm[4:]
            mid[49] += adv_raw()
            for tau in range(1, 9):
                p = 9 * (tau - 1) + 1
                pre[p].append(("wvm", None, "tap%d" % tau))
                if tau == 4:
                    pre[p].append(("wvm", None, "raw"))
                if tau == 5:
                    pre[p].append(("wlg", None, "rr"))
                pre[p].append(("i", "s_barrier", None))
                pre[p] += tr_move((TAPROW[tau] - cur) * ROWB)
                cur = TAPROW[tau]
                tr = tr_items(lambda ks, mt, half, tau=tau: wreg_half((tau * 3 + ks) * 3 + mt, half), "wf%d" % tau)
                for i, it in enumerate(tr):
                    mid[p + i // 3].append(it)
                if tau in (3, 4, 5):
                    dm = dma_items(S_W, TAPROW[tau + 3], (tau + 3) * 18432, "tap%d" % (tau + 3))
                    mid[p] = dm[:4] + mid[p]
                    mid[p + 1] = dm[4:] + mid[p + 1]
            for tau in range(9):
                pre[9 * tau].append(("wlg", None, "wf%d" % tau))
        if lateral:
            for t in range(3):
                b = LB[t]
                init = lat_init(LACC, PV + t * 6)
                pre[b].append(("wvm", None, "cf%d" % t))
                ni, nm = (6, 2) if comp else (4, 1)
                for i, s_ in enumerate(init):
                    mid[b + i // ni].append(("i", s_, None))
                b1 = b + 12 // ni
                k = 0
                for ks in range(3):
                    for mt in range(3):
                        mid[b1 + k // nm].append(("lm", lat_mfma(LACC, CF + t * 12, ks, mt), None))
                        k += 1
                b2 = b1 + (8 // nm) + 3
                pk = pack_items(LACC)
                mid[b2] += pk[:4]
                mid[b2 + 1].append(("ds", "ds_write_b128 v%d, %s offset:%d" % (vWr[0], v4(LACC), t * 3072), "w"))
                mid[b2 + 1] += pk[4:]
                mid[b2 + 2].append(("ds", "ds_write_b64 v%d, %s offset:%d" % (vWr[1], v2(LACC + 8), t * 3072), "w"))
                ld = issue_p_loads(t)
                for i, it in enumerate(ld):
                    mid[b1 + 1 + i].append(it)
            adv = adv_p()
            if loop_oob:
                adv.append(("i", "s_cmp_eq_u32 s%d, 2" % sLoop, None))
                adv.append(("i", "s_cselect_b32 s%d, 0x%x, s%d" % (sP, OOB, sP), None))
            post = adv + [("i", "v_add_u32 v%d, %d, v%d" % (x, 2 * ROWB, x), None) for x in vWr + [vCR]]
        else:
            post = []
        for sig in range(81):
            t, kap = slot_tk(sig, kouter)
            run(pre[sig])
            g.wait(lg="B%d" % (sig % 9))
            items = [x for x in mid[sig] if x[0] != "lm"]
            lms = [x for x in mid[sig] if x[0] == "lm"]
            per = (len(items) + 2) // 3
            for mt in range(3):
                a = ACC + (t * 3 + mt) * 4
                c = "0" if kap == 0 else v4(a)
                e("v_mfma_f32_16x16x32_bf16 %s, %s, %s, %s" % (v4(a), wreg(kap * 3 + mt), v4(BBUF[sig % 9]), c))
                run(items[mt * per:(mt + 1) * per])
            for x in lms:
                e(x[1])
            nxt = sig + LEAD
            if nxt == 9 and not first:
                g.wait(lg="w", vm=("rawn" if "rawn" in g.vm else "raw") if lateral else None)
                e("s_barrier")
            if nxt < 81:
                g.ds(bread(nxt, kouter, 0), "B%d" % (nxt % 9))
            elif not last:
                g.ds(bread(nxt - 81, False, 2 * ROWB), "B%d" % (nxt % 9))
        run(post)
        if not last:
            for d in range(3):
                e("v_add_u32 v%d, %d, v%d" % (vB[d], 2 * ROWB, vB[d]))
        if first:
            e("v_sub_u32 v%d, v%d, v%d" % (vTa, vO, vP))
            e("v_add_u32 v%d, v%d, v%d" % (vO2, vP2, vTa))
            for t in range(2):
                run(drain_items(t, 0))
                run(drain_items(t, 1))
                run(adv_o(t))

    stamp()
    step(first=True, lateral=True, last=False)
    stamp()
    e("s_mov_b32 s%d, 0" % sLoop)
    g.label("L_loop")
    base = len(g.out)
    bodies = []
    while True:
        st_in = (list(g.lg), list(g.vm))
        del g.out[base:]
        step(first=False, lateral=True, last=False, loop_oob=True)
        bodies.append(g.out[base:])
        if (g.lg, g.vm) == st_in or (EXP and len(bodies) > 3):
            break
        assert len(bodies) < 6
    for other in bodies[:-1]:
        assert len(other) == len(bodies[-1])
        for a, b in zip(other, bodies[-1]):
            if isinstance(a, Wait):
                b.merge(a)
            else:
                assert a == b
    e("s_add_u32 s%d, s%d, 1" % (sLoop, sLoop))
    e("s_cmp_lt_u32 s%d, 4" % sLoop)
    e("s_cbranch_scc1 L_loop")
    stamp()
    step(first=False, lateral=False, last=True)
    e("s_nop 7")
    run(drain_items(2, 0))
    run(drain_items(2, 1))
    if STAMPS:
        stamp()
        g.drain(vm=True)
        stamp()
        e("s_load_dwordx2 s[40:41], s[0:1], 48")
        e("s_waitcnt lgkmcnt(0)")
        srd(S_CF, 40, 268435456)
        e("s_lshl_b32 s%d, s2, 2" % sT[0])
        e("s_add_u32 s%d, s%d, s%d" % (sT[0], sT[0], sW))
        e("s_lshl_b32 s%d, s%d, 7" % (sT[0], sT[0]))
        e("v_mov_b32 v1, 0")
        for i in range(nst[0]):
            e("v_mov_b32 v2, s%d" % (ST0 + i))
            e("buffer_store_dword v2, v1, s[%d:%d], s%d offen offset:%d" % (S_CF, S_CF + 3, sT[0], 4 * i))
        print("stamps:", nst[0])
    g.label("L_end")
    e("s_endpgm")
    g.out.append('.section .rodata,"a"')
    g.out.append(".p2align 6")
    g.out.append(".amdhsa_kernel %s_kernel" % NAME)
    g.out.append("  .amdhsa_next_free_vgpr 512")
    g.out.append("  .amdhsa_next_free_sgpr 102")
    g.out.append("  .amdhsa_accum_offset 256")
    g.out.append("  .amdhsa_group_segment_fixed_size 0")
    g.out.append("  .amdhsa_kernarg_size 56")
    g.out.append("  .amdhsa_user_sgpr_count 2")
    g.out.append("  .amdhsa_user_sgpr_kernarg_segment_ptr 1")
    g.out.append("  .amdhsa_system_sgpr_workgroup_id_x 1")
    g.out.append(".end_amdhsa_kernel")
    outp = sys.argv[1] if len(sys.argv) > 1 else "cdna_kernels/%s.s" % NAME
    open(outp, "w").write(g.text())
    print("wrote", outp)


main()
```

```python
import sys, os
from collections import defaultdict

NAME = "standalone__detection_seg_fpn_lateral__vision"

ROWB = 9600
PB = 14 * ROWB
DUMMY = PB
PS0 = PB + 192
LDS_TOTAL = 163840
OOB = 0x40000000
LDS_DROP = 0x30000
SLOT = [4, 6, 8, 10, 12]
WLROW = SLOT[0]
TAPROW = [12, 10, 8, 6, 12, 10, 8, 12, 10]
TAP_ISSUE = {1: 4, 2: 5, 3: 6, 5: 7, 6: 8}

S_CF, S_P, S_WL, S_W, S_O = 4, 8, 12, 16, 20
sW, sH, sS, sBY, sBX, sY0 = 24, 25, 26, 27, 28, 29
sCFd, sRow, sPg, sPl = 30, 31, 32, 33
sO = [34, 35, 36]
sLoop = 37
sT = [38, 39, 50, 51, 52, 53, 54, 55]
sFlW, sDirR, sDirP, sPi = 56, 57, 58, 59
sLoW, sGoW, sPw1, sPw2 = 60, 61, 62, 63
sYb, sDir, sF = 40, 41, 42
ST0 = 64

vTa2, vD, vTm2 = 0, 1, 2
vO2 = 2
vCR, vP, vO = 3, 4, 5
vB = [6, 7, 8]
vWr = [9, 10]
vP2 = 11
ACC = 12
BBUF = [48, 52, 56, 60, 64, 68, 244, 248, 252]
LACC = 72
CF = 84
PV = 120
vTa, vTm = 138, 139
WL = 140
WV = 176
LEAD = int(os.environ.get("LEAD", "8"))

STAMPS = int(os.environ.get("STAMPS", "0"))
EXP = os.environ.get("EXP", "")


def wreg(f):
    if f < 64:
        return "a[%d:%d]" % (4 * f, 4 * f + 3)
    r = WV + 4 * (f - 64)
    return "v[%d:%d]" % (r, r + 3)


def wreg_half(f, half):
    if f < 64:
        r = 4 * f + 2 * half
        return "a[%d:%d]" % (r, r + 1)
    r = WV + 4 * (f - 64) + 2 * half
    return "v[%d:%d]" % (r, r + 1)


def v4(r):
    return "v[%d:%d]" % (r, r + 3)


def v2(r):
    return "v[%d:%d]" % (r, r + 1)


class Wait:
    def __init__(self, vm, lg):
        self.vm, self.lg = vm, lg

    def merge(self, o):
        f = lambda a, b: b if a is None else (a if b is None else min(a, b))
        self.vm, self.lg = f(self.vm, o.vm), f(self.lg, o.lg)

    def text(self):
        parts = []
        if self.vm is not None:
            parts.append("vmcnt(%d)" % self.vm)
        if self.lg is not None:
            parts.append("lgkmcnt(%d)" % self.lg)
        return ("    s_waitcnt " + " ".join(parts)) if parts else None


class Gen:
    def __init__(self):
        self.out = []
        self.lg = []
        self.vm = []

    def e(self, s):
        self.out.append("    " + s)

    def label(self, s):
        self.out.append(s + ":")

    def ds(self, s, tag=None):
        self.e(s)
        self.lg.append(tag)

    def vmem(self, s, tag=None):
        self.e(s)
        self.vm.append(tag)

    def _need(self, q, tag, mx, oldest=False):
        if tag is None or tag not in q:
            return None
        if oldest:
            pos = [i for i, x in enumerate(q) if x == tag]
            idx = pos[min(6, len(pos) - 1)]
        else:
            idx = len(q) - 1 - q[::-1].index(tag)
        n = len(q) - 1 - idx
        n = min(n, mx)
        del q[: len(q) - n]
        return n

    def wait(self, lg=None, vm=None, oldest=False):
        self.out.append(Wait(self._need(self.vm, vm, 63, oldest), self._need(self.lg, lg, 15)))

    def drain(self, lg=False, vm=False):
        self.out.append(Wait(0 if vm else None, 0 if lg else None))
        if vm:
            self.vm = []
        if lg:
            self.lg = []

    def text(self):
        r = []
        for x in self.out:
            if isinstance(x, Wait):
                t = x.text()
                if t:
                    r.append(t)
            else:
                r.append(x)
        return "\n".join(r) + "\n"


g = Gen()
e = g.e
nst = [0]


def stamp(i=None):
    if not STAMPS:
        return
    if i is None:
        i = nst[0]
    nst[0] = max(nst[0], i + 1)
    e("s_memtime s[100:101]")
    e("s_waitcnt lgkmcnt(0)")
    e("s_mov_b32 s%d, s100" % (ST0 + i))


def srd(d, ptr, nbytes):
    e("s_mov_b32 s%d, s%d" % (d, ptr))
    e("s_and_b32 s%d, s%d, 0xffff" % (d + 1, ptr + 1))
    e("s_mov_b32 s%d, 0x%x" % (d + 2, nbytes))
    e("s_mov_b32 s%d, 0x00020000" % (d + 3))


def lat_init(acc, pv):
    r = []
    for mt in range(3):
        a = acc + 4 * mt
        p = pv + 2 * mt
        r.append("v_lshlrev_b32 v%d, 16, v%d" % (a, p))
        r.append("v_and_b32 v%d, 0xffff0000, v%d" % (a + 1, p))
        r.append("v_lshlrev_b32 v%d, 16, v%d" % (a + 2, p + 1))
        r.append("v_and_b32 v%d, 0xffff0000, v%d" % (a + 3, p + 1))
    return r


def lat_mfma(acc, cf, ks, mt):
    a = acc + 4 * mt
    return "v_mfma_f32_16x16x32_bf16 %s, %s, %s, %s" % (
        v4(a), v4(WL + (ks * 3 + mt) * 4), v4(cf + 4 * ks), v4(a))


def run(items):
    for kind, s, tag in items:
        if kind == "vm":
            g.vmem(s, tag)
        elif kind == "vmx":
            e("s_mov_b64 exec, 0xffffffff")
            g.vmem(s, tag)
            e("s_mov_b64 exec, -1")
        elif kind == "vm8":
            e("s_mov_b64 exec, 0xff")
            g.vmem(s, tag)
            e("s_mov_b64 exec, -1")
        elif kind == "ds":
            g.ds(s, tag)
        elif kind == "wvm":
            g.wait(vm=tag)
        elif kind == "wlg":
            g.wait(lg=tag)
        else:
            e(s)


def w_dma(srd_reg, row, tau, tag):
    r = []
    r.append(("i", "s_add_u32 m0, s%d, %d" % (sLoW, row * ROWB), None))
    if tau is None:
        r.append(("i", "s_mov_b32 s%d, s%d" % (sT[7], sGoW), None))
    else:
        r.append(("i", "s_add_u32 s%d, s%d, %d" % (sT[7], sGoW, tau * 18432), None))
        if tau // 3 == 0:
            r.append(("i", "s_add_u32 s%d, s%d, s%d" % (sT[7], sT[7], sFlW), None))
        elif tau // 3 == 2:
            r.append(("i", "s_sub_u32 s%d, s%d, s%d" % (sT[7], sT[7], sFlW), None))
    for k in range(4):
        r.append(("vm", "buffer_load_dwordx4 v%d, s[%d:%d], s%d offen offset:%d lds" % (
            vD, srd_reg, srd_reg + 3, sT[7], 1024 * k), tag))
    r.append(("i", "s_add_u32 m0, m0, 4096", None))
    r.append(("i", "s_add_u32 s%d, s%d, 4096" % (sT[7], sT[7]), None))
    r.append(("vmx", "buffer_load_dwordx4 v%d, s[%d:%d], s%d offen lds" % (vD, srd_reg, srd_reg + 3, sT[7]), tag))
    return r


def raw_dma(tag):
    r = []
    r.append(("i", "s_add_u32 m0, s%d, s%d" % (sLoW, sRow), None))
    r.append(("i", "s_nop 0", None))
    for k in range(4):
        r.append(("vm", "buffer_load_dwordx4 v%d, s[%d:%d], s%d offen offset:%d nt lds" % (
            vD, S_CF, S_CF + 3, sCFd, 1024 * k), tag))
    r.append(("i", "s_add_u32 m0, m0, 4096", None))
    r.append(("i", "s_add_u32 s%d, s%d, 4096" % (sT[7], sCFd), None))
    r.append(("vmx", "buffer_load_dwordx4 v%d, s[%d:%d], s%d offen nt lds" % (vD, S_CF, S_CF + 3, sT[7]), tag))
    return r


def raw_adv():
    return [("i", "s_add_u32 s%d, s%d, s%d" % (sCFd, sCFd, sDirR), None),
            ("i", "s_add_u32 s%d, s%d, %d" % (sRow, sRow, 2 * ROWB), None)]


def p_dma(tag):
    r = []
    r.append(("i", "s_add_u32 m0, s%d, s%d" % (sPl, sPw1), None))
    r.append(("i", "s_add_u32 s%d, s%d, s%d" % (sT[7], sPg, sPw1), None))
    r.append(("vm", "buffer_load_dwordx4 v%d, s[%d:%d], s%d offen nt lds" % (vD, S_P, S_P + 3, sT[7]), tag))
    r.append(("i", "s_add_u32 m0, s%d, s%d" % (sPl, sPw2), None))
    r.append(("i", "s_add_u32 s%d, s%d, s%d" % (sT[7], sPg, sPw2), None))
    r.append(("vm8", "buffer_load_dwordx4 v%d, s[%d:%d], s%d offen nt lds" % (vD, S_P, S_P + 3, sT[7]), tag))
    return r


def p_adv():
    return [("i", "s_add_u32 s%d, s%d, s%d" % (sPg, sPg, sDirP), None),
            ("i", "s_add_u32 s%d, s%d, 4608" % (sPl, sPl), None),
            ("i", "s_cmp_eq_u32 s%d, %d" % (sPl, PS0 + 6 * 4608), None),
            ("i", "s_cselect_b32 s%d, %d, s%d" % (sPl, PS0, sPl), None)]


def tr_items(regfn, tag):
    r = []
    for ks in range(3):
        for mt in range(3):
            for half in range(2):
                co = 8 * mt if mt < 2 else 0
                if ks == 0:
                    a, o = (vTa if mt < 2 else vTa2), 768 * half + co
                elif ks == 1:
                    a, o = (vTm if mt < 2 else vTm2), 6144 + 768 * half + co
                else:
                    a, o = (vTa if mt < 2 else vTa2), ROWB + 3072 + 768 * half + co
                r.append(("ds", "ds_read_b64_tr_b16 %s, v%d offset:%d" % (regfn(ks, mt, half), a, o), tag))
    return r


trrow = [WLROW]


def tr_goto(row):
    d = (row - trrow[0]) * ROWB
    trrow[0] = row
    if d == 0:
        return []
    return [("i", "v_add_u32 v%d, 0x%x, v%d" % (x, d & 0xffffffff, x), None) for x in (vTa, vTm, vTa2, vTm2)]


def read_wl():
    run(tr_goto(WLROW))
    run(tr_items(lambda ks, mt, half: v2(WL + (ks * 3 + mt) * 4 + 2 * half), "wf"))


def read_tap(tau):
    run(tr_goto(TAPROW[tau]))
    run(tr_items(lambda ks, mt, half: wreg_half((tau * 3 + ks) * 3 + mt, half), "wf"))


def pack_items(a):
    return [("i", "v_cvt_pk_bf16_f32 v%d, v%d, v%d" % (a, a, a + 1), None),
            ("i", "v_cvt_pk_bf16_f32 v%d, v%d, v%d" % (a + 1, a + 2, a + 3), None),
            ("i", "v_cvt_pk_bf16_f32 v%d, v%d, v%d" % (a + 2, a + 4, a + 5), None),
            ("i", "v_cvt_pk_bf16_f32 v%d, v%d, v%d" % (a + 3, a + 6, a + 7), None),
            ("i", "v_cvt_pk_bf16_f32 v%d, v%d, v%d" % (a + 8, a + 8, a + 9), None),
            ("i", "v_cvt_pk_bf16_f32 v%d, v%d, v%d" % (a + 9, a + 10, a + 11), None)]


def raw_reads(cf, off, tag):
    r = []
    for t in range(3):
        for ks in range(3):
            r.append(("ds", "ds_read_b128 %s, v%d offset:%d" % (
                v4(cf + (t * 3 + ks) * 4), vCR, off + t * 3072 + 64 * ks), tag))
    return r


def p_reads(off, tag):
    r = []
    for t in range(3):
        r.append(("ds", "ds_read_b128 %s, v%d offset:%d" % (v4(PV + t * 6), vP, off + 1536 * t), tag))
        r.append(("ds", "ds_read_b64 %s, v%d offset:%d" % (v2(PV + t * 6 + 4), vP2, off + 1536 * t), tag))
    return r


def main():
    hdr = open("cdna_kernels/%s.s.ref" % NAME).read().split("\n")
    for ln in hdr:
        if ln.startswith("; @launch"):
            break
        g.out.append(ln)
    g.out.append("; @launch grid=(256,1,1) block=(256,1,1) lds=%d" % LDS_TOTAL)
    g.out.append('.amdgcn_target "amdgcn-amd-amdhsa--gfx950"')
    g.out.append(".text")
    g.out.append(".globl %s_kernel" % NAME)
    g.out.append(".p2align 8")
    g.out.append(".type %s_kernel,@function" % NAME)
    g.label("%s_kernel" % NAME)

    e("s_cmp_ge_u32 s2, 256")
    e("s_cbranch_scc1 L_end")
    e("s_load_dwordx8 s[40:47], s[0:1], 0")
    e("s_load_dwordx2 s[48:49], s[0:1], 32")
    stamp()
    vL, vN, vQ, vT0, vT1, vT2, vT3, vT4 = 244, 245, 246, 247, 248, 249, 250, 251
    CF2 = 12
    HCF, HPV = 48, 60
    vHc, vHp, vHp2, vHw, vHw2 = 66, 67, 68, 69, 70
    LACC2 = 244
    e("v_and_b32 v%d, 63, v0" % vL)
    e("v_lshrrev_b32 v%d, 6, v0" % vT0)
    e("v_and_b32 v%d, 15, v%d" % (vN, vL))
    e("v_lshrrev_b32 v%d, 4, v%d" % (vQ, vL))
    e("v_readfirstlane_b32 s%d, v%d" % (sW, vT0))
    e("v_lshlrev_b32 v%d, 4, v%d" % (vD, vL))
    e("s_nop 2")
    e("s_and_b32 s%d, s%d, 1" % (sH, sW))
    e("s_lshr_b32 s%d, s%d, 1" % (sS, sW))
    e("s_lshr_b32 s%d, s2, 3" % sBY)
    e("s_and_b32 s%d, s2, 7" % sBX)
    e("s_mul_i32 s%d, s%d, 12" % (sY0, sBY))
    e("s_mul_i32 s%d, s%d, 9216" % (sT[0], sBX))
    e("s_mul_i32 s%d, s%d, 96" % (sT[1], sH))
    e("s_mul_i32 s%d, s%d, %d" % (sT[2], sS, ROWB))
    e("s_mul_i32 s%d, s%d, 4608" % (sT[3], sBX))
    e("s_mul_i32 s%d, s%d, 4608" % (sGoW, sW))
    e("s_mul_i32 s%d, s%d, 4608" % (sLoW, sH))
    e("s_add_u32 s%d, s%d, s%d" % (sLoW, sLoW, sT[2]))
    e("s_add_u32 s%d, s%d, 192" % (sLoW, sLoW))
    e("s_lshl_b32 s%d, s%d, 10" % (sPw1, sW))
    e("s_lshl_b32 s%d, s%d, 7" % (sPw2, sW))
    e("s_add_u32 s%d, s%d, 4096" % (sPw2, sPw2))
    e("s_waitcnt lgkmcnt(0)")
    srd(S_CF, 40, 28311552)
    srd(S_P, 42, 7077888)
    srd(S_WL, 44, 18432)
    srd(S_W, 46, 165888)
    srd(S_O, 48, 28311552)
    flip_src = "s_and_b32 s%d, s%d, 1" % (sF, sBY)
    if "noflip" in EXP:
        flip_src = "s_mov_b32 s%d, 0" % sF
    e(flip_src)
    e("s_mul_i32 s%d, s%d, 110592" % (sFlW, sF))
    e("s_lshl_b32 s%d, s%d, 1" % (sDir, sF))
    e("s_sub_u32 s%d, 1, s%d" % (sDir, sDir))
    e("s_mul_i32 s%d, s%d, 13" % (sYb, sF))
    e("s_add_u32 s%d, s%d, s%d" % (sYb, sYb, sY0))
    e("s_sub_u32 s%d, s%d, 1" % (sYb, sYb))
    e("s_mul_i32 s%d, s%d, %d" % (sDirR, sDir, 2 * 73728))
    e("s_mul_i32 s%d, s%d, 36864" % (sDirP, sDir))
    e("s_mul_i32 s%d, s%d, s%d" % (sT[4], sDir, sS))
    e("s_add_u32 s%d, s%d, s%d" % (sT[4], sT[4], sYb))
    e("s_mul_i32 s%d, s%d, 73728" % (sCFd, sT[4]))
    e("s_mul_i32 s%d, s%d, 4608" % (sT[5], sH))
    e("s_add_u32 s%d, s%d, s%d" % (sCFd, sCFd, sT[5]))
    e("s_add_u32 s%d, s%d, s%d" % (sCFd, sCFd, sT[0]))
    e("s_mov_b32 s%d, 0" % sRow)
    e("s_mul_i32 s%d, s%d, 6" % (sT[5], sBY))
    e("s_mul_i32 s%d, s%d, 7" % (sT[6], sF))
    e("s_add_u32 s%d, s%d, s%d" % (sT[5], sT[5], sT[6]))
    e("s_sub_u32 s%d, s%d, 1" % (sT[5], sT[5]))
    e("s_mul_i32 s%d, s%d, 36864" % (sPg, sT[5]))
    e("s_add_u32 s%d, s%d, s%d" % (sPg, sPg, sT[3]))
    e("s_mov_b32 s%d, %d" % (sPl, PS0))
    e("s_add_u32 s%d, s%d, s%d" % (sT[6], sT[4], sDir))
    e("s_mul_i32 s%d, s%d, 73728" % (sO[0], sT[6]))
    e("s_add_u32 s%d, s%d, 3072" % (sO[1], sO[0]))
    e("s_add_u32 s%d, s%d, 6144" % (sO[2], sO[0]))
    e("s_sub_u32 s%d, s%d, s%d" % (sO[2], sO[2], sDirR))

    run(w_dma(S_WL, WLROW, None, "a"))
    e("s_mov_b32 s%d, s%d" % (sT[6], sCFd))
    e("s_cmp_lt_i32 s%d, 0" % sCFd)
    e("s_cselect_b32 s%d, 0x%x, s%d" % (sCFd, OOB, sCFd))
    run(raw_dma("a"))
    e("s_mov_b32 s%d, s%d" % (sCFd, sT[6]))
    run(raw_adv())
    e("s_mov_b32 s%d, s%d" % (sT[6], sPg))
    e("s_cmp_lt_i32 s%d, 0" % sPg)
    e("s_cselect_b32 s%d, 0x%x, s%d" % (sPg, OOB, sPg))
    run(p_dma("a"))
    e("s_mov_b32 s%d, s%d" % (sPg, sT[6]))
    run(p_adv())
    run(p_dma("a"))
    run(p_adv())
    run(raw_dma("b"))
    run(raw_adv())
    run(p_dma("b"))
    run(p_adv())

    e("v_mul_u32_u24 v%d, 192, v%d" % (vT0, vN))
    e("v_lshl_add_u32 v%d, v%d, 4, v%d" % (vT1, vQ, vT0))
    e("v_add_u32 v%d, s%d, v%d" % (vO, sT[0], vT1))
    e("v_add_u32 v%d, s%d, v%d" % (vO, sT[1], vO))
    e("v_add_u32 v%d, s%d, v%d" % (vCR, sT[2], vT1))
    e("v_add_u32 v%d, 192, v%d" % (vCR, vCR))
    e("v_lshrrev_b32 v%d, 1, v%d" % (vT1, vN))
    e("v_mul_u32_u24 v%d, 192, v%d" % (vT1, vT1))
    e("s_mul_i32 s%d, s%d, 4608" % (sT[5], sS))
    e("s_add_u32 s%d, s%d, %d" % (sT[5], sT[5], PS0))
    e("s_add_u32 s%d, s%d, s%d" % (sT[5], sT[5], sT[1]))
    e("v_add_u32 v%d, s%d, v%d" % (vT1, sT[5], vT1))
    e("v_lshl_add_u32 v%d, v%d, 4, v%d" % (vP, vQ, vT1))
    e("v_lshl_add_u32 v%d, v%d, 3, v%d" % (vP2, vQ, vT1))
    e("v_add_u32 v%d, 64, v%d" % (vP2, vP2))
    e("s_mul_i32 s%d, s%d, 48" % (sT[4], sBX))
    e("s_mul_i32 s%d, s%d, 49" % (sT[5], sS))
    e("s_add_u32 s%d, s%d, s%d" % (sT[4], sT[4], sT[5]))
    e("s_sub_u32 s%d, s%d, 1" % (sT[4], sT[4]))
    e("v_mul_lo_u32 v%d, v%d, s%d" % (vT1, vN, sDir))
    e("v_add_u32 v%d, s%d, v%d" % (vT1, sYb, vT1))
    e("v_cmp_gt_u32 vcc, 0x180, v%d" % vT1)
    e("v_cmp_gt_u32 s[44:45], 14, v%d" % vN)
    e("s_and_b64 vcc, vcc, s[44:45]")
    e("s_cmp_lt_u32 s%d, 384" % sT[4])
    e("s_cselect_b64 s[46:47], -1, 0")
    e("s_and_b64 vcc, vcc, s[46:47]")
    e("v_mul_u32_u24 v%d, 384, v%d" % (vT2, vT1))
    e("v_add_u32 v%d, s%d, v%d" % (vT2, sT[4], vT2))
    e("v_mul_u32_u24 v%d, 192, v%d" % (vT2, vT2))
    e("v_lshl_add_u32 v%d, v%d, 4, v%d" % (vT2, vQ, vT2))
    e("v_mov_b32 v%d, 0x%x" % (vT3, OOB))
    e("v_cndmask_b32 v%d, v%d, v%d, vcc" % (vHc, vT3, vT2))
    e("v_lshrrev_b32 v%d, 1, v%d" % (vT2, vT1))
    e("v_mul_u32_u24 v%d, 192, v%d" % (vT2, vT2))
    e("s_lshr_b32 s%d, s%d, 1" % (sT[5], sT[4]))
    e("v_add_u32 v%d, s%d, v%d" % (vT2, sT[5], vT2))
    e("v_mul_u32_u24 v%d, 192, v%d" % (vT2, vT2))
    e("v_add_u32 v%d, s%d, v%d" % (vT2, sT[1], vT2))
    e("v_lshl_add_u32 v%d, v%d, 4, v%d" % (vT4, vQ, vT2))
    e("v_cndmask_b32 v%d, v%d, v%d, vcc" % (vHp, vT3, vT4))
    e("v_lshl_add_u32 v%d, v%d, 3, v%d" % (vT4, vQ, vT2))
    e("v_add_u32 v%d, 64, v%d" % (vT4, vT4))
    e("v_cndmask_b32 v%d, v%d, v%d, vcc" % (vHp2, vT3, vT4))
    e("v_mul_u32_u24 v%d, %d, v%d" % (vT2, ROWB, vN))
    e("s_mul_i32 s%d, s%d, %d" % (sT[5], sS, 49 * 192))
    e("v_add_u32 v%d, s%d, v%d" % (vT2, sT[5], vT2))
    e("v_mov_b32 v%d, 0x%x" % (vT3, DUMMY))
    e("v_cndmask_b32 v%d, v%d, v%d, s[44:45]" % (vT2, vT3, vT2))
    e("v_add_u32 v%d, s%d, v%d" % (vT2, sT[1], vT2))
    e("v_lshl_add_u32 v%d, v%d, 4, v%d" % (vHw, vQ, vT2))
    e("v_lshl_add_u32 v%d, v%d, 3, v%d" % (vHw2, vQ, vT2))
    e("v_add_u32 v%d, 64, v%d" % (vHw2, vHw2))
    for d in range(3):
        e("v_add_u32 v%d, %d, v%d" % (vT1, d, vN))
        e("v_bfe_u32 v%d, v%d, 2, 1" % (vT2, vT1))
        e("v_lshlrev_b32 v%d, 5, v%d" % (vT2, vT2))
        e("v_lshlrev_b32 v%d, 4, v%d" % (vT3, vQ))
        e("v_xor_b32 v%d, v%d, v%d" % (vT2, vT2, vT3))
        e("v_mul_u32_u24 v%d, 192, v%d" % (vT1, vT1))
        e("v_add3_u32 v%d, v%d, v%d, s%d" % (vB[d], vT1, vT2, sT[2]))
    e("v_add_u32 v%d, 1, v%d" % (vT1, vN))
    e("v_bfe_u32 v%d, v%d, 2, 1" % (vT2, vT1))
    e("v_lshlrev_b32 v%d, 5, v%d" % (vT2, vT2))
    e("v_mul_u32_u24 v%d, 192, v%d" % (vT1, vT1))
    e("v_lshlrev_b32 v%d, 4, v%d" % (vT3, vQ))
    e("v_add_u32 v%d, s%d, v%d" % (vT3, sT[1], vT3))
    e("v_xor_b32 v%d, v%d, v%d" % (vT3, vT3, vT2))
    e("v_add3_u32 v%d, v%d, v%d, s%d" % (vWr[0], vT1, vT3, sT[2]))
    e("v_lshlrev_b32 v%d, 3, v%d" % (vT3, vQ))
    e("v_add_u32 v%d, s%d, v%d" % (vT3, sT[1], vT3))
    e("v_add_u32 v%d, 64, v%d" % (vT3, vT3))
    e("v_xor_b32 v%d, v%d, v%d" % (vT3, vT3, vT2))
    e("v_add3_u32 v%d, v%d, v%d, s%d" % (vWr[1], vT1, vT3, sT[2]))
    e("v_lshrrev_b32 v%d, 2, v%d" % (vT1, vN))
    e("v_lshl_add_u32 v%d, v%d, 3, v%d" % (vT1, vQ, vT1))
    e("v_mul_u32_u24 v%d, 192, v%d" % (vT1, vT1))
    e("v_add_u32 v%d, s%d, v%d" % (vT1, sT[1], vT1))
    e("v_add_u32 v%d, 0x%x, v%d" % (vT1, WLROW * ROWB + 192, vT1))
    e("v_and_b32 v%d, 3, v%d" % (vT2, vN))
    e("v_lshl_add_u32 v%d, v%d, 4, v%d" % (vTa, vT2, vT1))
    e("v_lshl_add_u32 v%d, v%d, 3, v%d" % (vTa2, vT2, vT1))
    e("v_add_u32 v%d, 64, v%d" % (vTa2, vTa2))
    e("v_lshrrev_b32 v%d, 1, v%d" % (vT2, vQ))
    e("v_mul_u32_u24 v%d, 384, v%d" % (vT2, vT2))
    e("v_add_u32 v%d, v%d, v%d" % (vTm, vTa, vT2))
    e("v_add_u32 v%d, v%d, v%d" % (vTm2, vTa2, vT2))
    stamp()

    def issue_halo():
        for ks in range(3):
            g.vmem("buffer_load_dwordx4 %s, v%d, s[%d:%d], 0 offen offset:%d" % (
                v4(HCF + 4 * ks), vHc, S_CF, S_CF + 3, 64 * ks), "h")
        g.vmem("buffer_load_dwordx4 %s, v%d, s[%d:%d], 0 offen" % (v4(HPV), vHp, S_P, S_P + 3), "h")
        g.vmem("buffer_load_dwordx2 %s, v%d, s[%d:%d], 0 offen" % (v2(HPV + 4), vHp2, S_P, S_P + 3), "h")

    def issue_unit(tag):
        run(raw_dma(tag))
        run(raw_adv())
        run(p_dma(tag))
        run(p_adv())

    def bar():
        e("s_barrier")

    def front():
        trrow[0] = WLROW
        issue_halo()
        NT0 = int(os.environ.get("NT0", "0"))
        for tau in range(NT0):
            run(w_dma(S_W, TAPROW[tau], tau, "t%d" % tau))
        stamp(2)
        g.wait(vm="a")
        bar()
        stamp(3)
        pr = p_reads(0, "x")
        rr = raw_reads(CF, 0, "x")
        run([(k, a, "p0") for (k, a, _) in pr])
        run([(k, a, "c0") for (k, a, _) in rr[:3]])
        read_wl()
        run([(k, a, "c1") for (k, a, _) in rr[3:]])

        tiles = []
        for t in range(3):
            tiles.append((CF + t * 12, PV + t * 6, vWr, t * 3072))
        tiles.append((HCF, HPV, [vHw, vHw2], 0))
        for t in range(3):
            tiles.append((CF2 + t * 12, PV + t * 6, vWr, 2 * ROWB + t * 3072))
        accs = [LACC, LACC2]

        def fin_items(i):
            cf, pv, wa, wo = tiles[i]
            a = accs[i % 2]
            r = pack_items(a)
            r.append(("ds", "ds_write_b128 v%d, %s offset:%d" % (wa[0], v4(a), wo), "w"))
            r.append(("ds", "ds_write_b64 v%d, %s offset:%d" % (wa[1], v2(a + 8), wo), "w"))
            return r

        g.wait(lg="p0")
        for s_ in lat_init(accs[0], tiles[0][1]):
            e(s_)
        g.wait(lg="wf")
        for i in range(len(tiles)):
            cf, pv, wa, wo = tiles[i]
            acc = accs[i % 2]
            gaps = defaultdict(list)
            if i == 1:
                gaps[2] += [("wlg", None, "c1"), ("wvm", None, "b"), ("i", "s_barrier", None)]
                gaps[2] += raw_reads(CF2, 2 * ROWB, "c2")[:5]
                gaps[3] += raw_reads(CF2, 2 * ROWB, "c2")[5:]
            if i == 5:
                gaps[2] += [("i", "s_barrier", None)]
            if i > 0:
                f = fin_items(i - 1)
                gaps[4] += f[:4]
                gaps[5] += f[4:]
            if i == 2:
                gaps[6] += p_reads(4608, "p1")
            if NT0 + i < 4:
                gaps[9] += w_dma(S_W, TAPROW[NT0 + i], NT0 + i, "t%d" % (NT0 + i))
            if i + 1 < len(tiles):
                ini = [("i", s_, None) for s_ in lat_init(accs[(i + 1) % 2], tiles[i + 1][1])]
                if i + 1 == 3:
                    ini = [("wvm", None, "h")] + ini
                if i + 1 == 4:
                    ini = [("wlg", None, "p1")] + ini
                gaps[6] += ini[:5]
                gaps[7] += ini[5:9]
                gaps[8] += ini[9:]
            if i == 1:
                g.wait(lg="c1")
            if i == 4:
                g.wait(lg="c2")
            k = 0
            for ks in range(3):
                for mt in range(3):
                    e(lat_mfma(acc, cf, ks, mt))
                    k += 1
                    run(gaps[k])
            e("s_nop 0")
        e("s_nop 7")
        run(fin_items(len(tiles) - 1))
        stamp(4)
        issue_unit("u2")
        g.wait(vm="t0", lg="w")
        bar()
        read_tap(0)
        stamp(5)

    front()

    for x in vWr + [vCR]:
        e("v_add_u32 v%d, %d, v%d" % (x, 4 * ROWB, x))
    e("v_add_u32 v%d, %d, v%d" % (vP, 2 * 4608, vP))
    e("v_add_u32 v%d, %d, v%d" % (vP2, 2 * 4608, vP2))
    e("s_add_u32 s%d, s%d, 2" % (sPi, sS))
    e("s_add_u32 s%d, s%d, s%d" % (sO[2], sO[2], sDirR))

    def slot_tk(sig, kouter):
        return (sig % 3, sig // 3) if kouter else (sig // 27, sig % 27)

    def bread(sig, bias, kouter=False):
        t, kap = slot_tk(sig, kouter)
        tau, ks = kap // 3, kap % 3
        di, dj = tau // 3, tau % 3
        off = di * ROWB + t * 3072 + 64 * ks + bias
        return "ds_read_b128 %s, v%d offset:%d" % (v4(BBUF[sig % 9]), vB[dj], off)

    for sig in range(LEAD):
        g.ds(bread(sig, 0, True), "B%d" % sig)

    def drain_items(t, part, so=None):
        a = ACC + t * 12
        p = pack_items(a)
        so = sO[t] if so is None else so
        if "nost" in EXP:
            return p[:4] if part == 0 else p[4:]
        if part == 0:
            return p[:4] + [("vm", "buffer_store_dwordx4 %s, v%d, s[%d:%d], s%d offen" % (
                v4(a), vO, S_O, S_O + 3, so), "st")]
        return p[4:] + [("vm", "buffer_store_dwordx2 %s, v%d, s[%d:%d], s%d offen" % (
            v2(a + 8), vO2, S_O, S_O + 3, so), "st")]

    def adv_o(t):
        return [("i", "s_add_u32 s%d, s%d, s%d" % (sO[t], sO[t], sDirR), None)]

    def step(first, lateral, last):
        kouter = first
        pre = defaultdict(list)
        mid = defaultdict(list)
        LB = [12, 34, 56]
        comp = False
        post = []
        if not first:
            for t in range(3):
                tp = (t + 2) % 3
                d0 = drain_items(tp, 0)
                d1 = drain_items(tp, 1)
                mid[27 * t + 3] += d0[:2]
                mid[27 * t + 4] += d0[2:4]
                mid[27 * t + 5] += d0[4:]
                mid[27 * t + 7] += d1[:2]
                mid[27 * t + 8] += d1[2:]
                mid[27 * t + 9] += adv_o(tp)
            if lateral:
                rr = raw_reads(CF, 0, "rr")
                pr = p_reads(0, "rr")
                seq = []
                for t in range(3):
                    seq += [(k, a, "rr%d" % t) for (k, a, _) in pr[2 * t:2 * t + 2] + rr[3 * t:3 * t + 3]]
                for i, it in enumerate(seq):
                    mid[2 + i].append(it)
                for t in range(3):
                    pre[LB[t]].append(("wlg", None, "rr%d" % t))
                pre[26].append(("wlg", None, "rr2"))
                pre[26].append(("i", "s_barrier", None))
                mid[27].append(("i", "s_cmp_ge_u32 s%d, 2" % sLoop, None))
                mid[27].append(("i", "s_cselect_b32 s%d, 0x%x, s%d" % (sCFd, OOB, sCFd), None))
                mid[27].append(("i", "s_cselect_b32 s%d, 0x%x, s%d" % (sRow, LDS_DROP, sRow), None))
                mid[27].append(("i", "s_cselect_b32 s%d, 0x%x, s%d" % (sPg, OOB, sPg), None))
                mid[27].append(("i", "s_cselect_b32 s%d, 0x%x, s%d" % (sPl, LDS_DROP, sPl), None))
                dm = raw_dma("u") + raw_adv() + p_dma("u") + p_adv()
                pos = 38
                for it in dm:
                    mid[pos].append(it)
                    if it[0] in ("vm", "vmx", "vm8"):
                        pos += 2
        else:
            comp = True
            LB = [38, 50, 62]
            rr = raw_reads(CF, 0, "rr") + p_reads(0, "rr")
            for i, it in enumerate(rr):
                mid[28 + i // 2].append(it)
            dm = raw_dma("u")
            mid[48] += dm[:4]
            mid[49] += dm[4:]
            mid[50] += raw_adv()
            dm = p_dma("u")
            mid[51] += dm[:3]
            mid[52] += dm[3:]
            mid[53] += p_adv()
            dm = raw_dma("u")
            mid[66] += dm[:4]
            mid[67] += dm[4:]
            mid[68] += raw_adv()
            dm = p_dma("u")
            mid[69] += dm[:3]
            mid[70] += dm[3:]
            mid[71] += p_adv()
            for tau in range(1, 9):
                p = 9 * (tau - 1) + 1
                if "s0nowait" not in EXP:
                    pre[p].append(("wvm", None, "t%d" % tau))
                if tau == 4:
                    pre[p].append(("wvm", None, "u2"))
                if tau == 5:
                    pre[p].append(("wlg", None, "rr"))
                if "s0nobar" not in EXP:
                    pre[p].append(("i", "s_barrier", None))
                pre[p] += tr_goto(TAPROW[tau])
                tr = tr_items(lambda ks, mt, half, tau=tau: wreg_half((tau * 3 + ks) * 3 + mt, half), "wf%d" % tau)
                if "s0notr" in EXP:
                    tr = tr[:1]
                for i, it in enumerate(tr):
                    mid[p + i // 3].append(it)
                if tau in TAP_ISSUE:
                    nt = TAP_ISSUE[tau]
                    dm = w_dma(S_W, TAPROW[nt], nt, "t%d" % nt)
                    mid[p] = dm[:5] + mid[p]
                    mid[p + 1] = dm[5:] + mid[p + 1]
            pre[0].append(("wlg", None, "wf"))
            for tau in range(1, 9):
                pre[9 * tau].append(("wlg", None, "wf%d" % tau))
        if lateral:
            for t in range(3):
                b = LB[t]
                init = lat_init(LACC, PV + t * 6)
                ni, nm = (6, 2) if comp else (4, 1)
                for i, s_ in enumerate(init):
                    mid[b + i // ni].append(("i", s_, None))
                b1 = b + 12 // ni
                k = 0
                for ks in range(3):
                    for mt in range(3):
                        mid[b1 + k // nm].append(("lm", lat_mfma(LACC, CF + t * 12, ks, mt), None))
                        k += 1
                b2 = b1 + (8 // nm) + 3
                pk = pack_items(LACC)
                mid[b2] += pk[:4]
                mid[b2 + 1].append(("ds", "ds_write_b128 v%d, %s offset:%d" % (vWr[0], v4(LACC), t * 3072), "w"))
                mid[b2 + 1] += pk[4:]
                mid[b2 + 2].append(("ds", "ds_write_b64 v%d, %s offset:%d" % (vWr[1], v2(LACC + 8), t * 3072), "w"))
            post = [("i", "v_add_u32 v%d, %d, v%d" % (x, 2 * ROWB, x), None) for x in vWr + [vCR]]
            mid[76] += [("i", "s_mov_b32 s%d, 4608" % sT[5], None),
                        ("i", "s_add_u32 s%d, s%d, 1" % (sPi, sPi), None),
                        ("i", "s_cmp_eq_u32 s%d, 6" % sPi, None),
                        ("i", "s_cselect_b32 s%d, 0x%x, s%d" % (sT[5], (-5 * 4608) & 0xffffffff, sT[5]), None)]
            mid[78] += [("i", "v_add_u32 v%d, s%d, v%d" % (vP, sT[5], vP), None),
                        ("i", "v_add_u32 v%d, s%d, v%d" % (vP2, sT[5], vP2), None)]
        for sig in range(81):
            t, kap = slot_tk(sig, kouter)
            if "s0" in EXP and first and sig % 9 == 0:
                stamp(10 + sig // 9)
            if "inloop" in EXP and (not first) and lateral and sig in (0, 2, 8, 9, 15, 27, 34, 54, 56, 73, 80):
                k_ = 10 + (0, 2, 8, 9, 15, 27, 34, 54, 56, 73, 80).index(sig)
                nst[0] = max(nst[0], k_ + 1)
                e("s_memtime s[100:101]")
                e("s_waitcnt lgkmcnt(0)")
                e("s_cmp_eq_u32 s%d, 1" % sLoop)
                e("s_cselect_b32 s%d, s100, s%d" % (ST0 + k_, ST0 + k_))
            run(pre[sig])
            g.wait(lg="B%d" % (sig % 9))
            items = [x for x in mid[sig] if x[0] != "lm"]
            lms = [x for x in mid[sig] if x[0] == "lm"]
            per = (len(items) + 2) // 3
            for mt in range(3):
                a = ACC + (t * 3 + mt) * 4
                c = "0" if kap == 0 else v4(a)
                e("v_mfma_f32_16x16x32_bf16 %s, %s, %s, %s" % (v4(a), wreg(kap * 3 + mt), v4(BBUF[sig % 9]), c))
                run(items[mt * per:(mt + 1) * per])
            for x in lms:
                e(x[1])
            nxt = sig + LEAD
            if nxt == 9 and not first:
                g.wait(lg="w", vm="u" if lateral else None, oldest=True)
                e("s_barrier")
            if nxt < 81:
                g.ds(bread(nxt, 0, kouter), "B%d" % (nxt % 9))
            elif not last:
                g.ds(bread(nxt - 81, 2 * ROWB), "B%d" % (nxt % 9))
        run(post)
        if not last:
            for d in range(3):
                e("v_add_u32 v%d, %d, v%d" % (vB[d], 2 * ROWB, vB[d]))
        if first:
            e("v_sub_u32 v%d, v%d, v%d" % (vTa, vP2, vP))
            e("v_add_u32 v%d, v%d, v%d" % (vO2, vO, vTa))
            for t in range(2):
                run(drain_items(t, 0))
                run(drain_items(t, 1))
                run(adv_o(t))

    step(first=True, lateral=True, last=False)
    stamp(6)
    e("s_mov_b32 s%d, 0" % sLoop)
    g.label("L_loop")
    base = len(g.out)
    bodies = []
    n = 0
    while True:
        st_in = (list(g.lg), list(g.vm))
        del g.out[base:]
        step(first=False, lateral=True, last=False)
        bodies.append(g.out[base:])
        n += 1
        if (g.lg, g.vm) == st_in:
            break
        assert n < 8
    for other in bodies[:-1]:
        assert len(other) == len(bodies[-1])
        for a, b in zip(other, bodies[-1]):
            if isinstance(a, Wait):
                b.merge(a)
            else:
                assert a == b
    e("s_add_u32 s%d, s%d, 1" % (sLoop, sLoop))
    e("s_cmp_lt_u32 s%d, 4" % sLoop)
    e("s_cbranch_scc1 L_loop")
    stamp(7)
    step(first=False, lateral=False, last=True)
    e("s_nop 7")
    run(drain_items(2, 0))
    run(drain_items(2, 1))
    if STAMPS:
        stamp(8)
        g.drain(vm=True)
        stamp(9)
        e("s_load_dwordx2 s[40:41], s[0:1], 48")
        e("s_waitcnt lgkmcnt(0)")
        srd(S_CF, 40, 268435456)
        e("s_lshl_b32 s%d, s2, 2" % sT[0])
        e("s_add_u32 s%d, s%d, s%d" % (sT[0], sT[0], sW))
        e("s_lshl_b32 s%d, s%d, 7" % (sT[0], sT[0]))
        e("v_mov_b32 v1, 0")
        for i in range(nst[0]):
            e("v_mov_b32 v2, s%d" % (ST0 + i))
            e("buffer_store_dword v2, v1, s[%d:%d], s%d offen offset:%d" % (S_CF, S_CF + 3, sT[0], 4 * i))
        print("stamps:", nst[0])
    g.label("L_end")
    e("s_endpgm")
    g.out.append('.section .rodata,"a"')
    g.out.append(".p2align 6")
    g.out.append(".amdhsa_kernel %s_kernel" % NAME)
    g.out.append("  .amdhsa_next_free_vgpr 512")
    g.out.append("  .amdhsa_next_free_sgpr 102")
    g.out.append("  .amdhsa_accum_offset 256")
    g.out.append("  .amdhsa_group_segment_fixed_size 0")
    g.out.append("  .amdhsa_kernarg_size 56")
    g.out.append("  .amdhsa_user_sgpr_count 2")
    g.out.append("  .amdhsa_user_sgpr_kernarg_segment_ptr 1")
    g.out.append("  .amdhsa_system_sgpr_workgroup_id_x 1")
    g.out.append(".end_amdhsa_kernel")
    outp = sys.argv[1] if len(sys.argv) > 1 else "cdna_kernels/%s.s" % NAME
    open(outp, "w").write(g.text())
    print("wrote", outp)


main()
```

```python
import sys, os
from collections import defaultdict

NAME = "standalone__detection_seg_fpn_lateral__vision"

ROWB = 9600
PB = 14 * ROWB
DUMMY = PB
PS0 = PB + 192
LDS_TOTAL = 163840
OOB = 0x40000000
LDS_DROP = 0x30000
SLOT = [4, 6, 8, 10, 12]
WLROW = SLOT[0]
TAPROW = [12, 10, 8, 6, 12, 10, 8, 12, 10]
TAP_ISSUE = {1: 4, 2: 5, 3: 6, 5: 7, 6: 8}

S_CF, S_P, S_WL, S_W, S_O = 4, 8, 12, 16, 20
sW, sH, sS, sBY, sBX, sY0 = 24, 25, 26, 27, 28, 29
sCFd, sRow, sPg, sPl = 30, 31, 32, 33
sO = [34, 35, 36]
sLoop = 37
sT = [38, 39, 50, 51, 52, 53, 54, 55]
sFlW, sDirR, sDirP, sPi = 56, 57, 58, 59
sLoW, sGoW, sPw1, sPw2 = 60, 61, 62, 63
sYb, sDir, sF = 40, 41, 42
ST0 = 64

vTa2, vD, vTm2 = 0, 1, 2
vO2 = 2
vCR, vP, vO = 3, 4, 5
vB = [6, 7, 8]
vWr = [9, 10]
vP2 = 11
ACC = 12
BBUF = [48, 52, 56, 60, 64, 68, 244, 248, 252]
LACC = 72
CF = 84
PV = 120
vTa, vTm = 138, 139
WL = 140
WV = 176
LEAD = int(os.environ.get("LEAD", "8"))

STAMPS = int(os.environ.get("STAMPS", "0"))
EXP = os.environ.get("EXP", "")


def wreg(f):
    if f < 64:
        return "a[%d:%d]" % (4 * f, 4 * f + 3)
    r = WV + 4 * (f - 64)
    return "v[%d:%d]" % (r, r + 3)


def wreg_half(f, half):
    if f < 64:
        r = 4 * f + 2 * half
        return "a[%d:%d]" % (r, r + 1)
    r = WV + 4 * (f - 64) + 2 * half
    return "v[%d:%d]" % (r, r + 1)


def v4(r):
    return "v[%d:%d]" % (r, r + 3)


def v2(r):
    return "v[%d:%d]" % (r, r + 1)


class Wait:
    def __init__(self, vm, lg):
        self.vm, self.lg = vm, lg

    def merge(self, o):
        f = lambda a, b: b if a is None else (a if b is None else min(a, b))
        self.vm, self.lg = f(self.vm, o.vm), f(self.lg, o.lg)

    def text(self):
        parts = []
        if self.vm is not None:
            parts.append("vmcnt(%d)" % self.vm)
        if self.lg is not None:
            parts.append("lgkmcnt(%d)" % self.lg)
        return ("    s_waitcnt " + " ".join(parts)) if parts else None


class Gen:
    def __init__(self):
        self.out = []
        self.lg = []
        self.vm = []

    def e(self, s):
        self.out.append("    " + s)

    def label(self, s):
        self.out.append(s + ":")

    def ds(self, s, tag=None):
        self.e(s)
        self.lg.append(tag)

    def vmem(self, s, tag=None):
        self.e(s)
        self.vm.append(tag)

    def _need(self, q, tag, mx, oldest=False):
        if tag is None or tag not in q:
            return None
        if oldest:
            pos = [i for i, x in enumerate(q) if x == tag]
            idx = pos[min(6, len(pos) - 1)]
        else:
            idx = len(q) - 1 - q[::-1].index(tag)
        n = len(q) - 1 - idx
        n = min(n, mx)
        del q[: len(q) - n]
        return n

    def wait(self, lg=None, vm=None, oldest=False):
        self.out.append(Wait(self._need(self.vm, vm, 63, oldest), self._need(self.lg, lg, 15)))

    def drain(self, lg=False, vm=False):
        self.out.append(Wait(0 if vm else None, 0 if lg else None))
        if vm:
            self.vm = []
        if lg:
            self.lg = []

    def text(self):
        r = []
        for x in self.out:
            if isinstance(x, Wait):
                t = x.text()
                if t:
                    r.append(t)
            else:
                r.append(x)
        return "\n".join(r) + "\n"


g = Gen()
e = g.e
nst = [0]


def stamp(i=None):
    if not STAMPS:
        return
    if i is None:
        i = nst[0]
    nst[0] = max(nst[0], i + 1)
    e("s_memtime s[100:101]")
    e("s_waitcnt lgkmcnt(0)")
    e("s_mov_b32 s%d, s100" % (ST0 + i))


def srd(d, ptr, nbytes):
    e("s_mov_b32 s%d, s%d" % (d, ptr))
    e("s_and_b32 s%d, s%d, 0xffff" % (d + 1, ptr + 1))
    e("s_mov_b32 s%d, 0x%x" % (d + 2, nbytes))
    e("s_mov_b32 s%d, 0x00020000" % (d + 3))


def lat_init(acc, pv):
    r = []
    for mt in range(3):
        a = acc + 4 * mt
        p = pv + 2 * mt
        r.append("v_lshlrev_b32 v%d, 16, v%d" % (a, p))
        r.append("v_and_b32 v%d, 0xffff0000, v%d" % (a + 1, p))
        r.append("v_lshlrev_b32 v%d, 16, v%d" % (a + 2, p + 1))
        r.append("v_and_b32 v%d, 0xffff0000, v%d" % (a + 3, p + 1))
    return r


def lat_mfma(acc, cf, ks, mt):
    a = acc + 4 * mt
    return "v_mfma_f32_16x16x32_bf16 %s, %s, %s, %s" % (
        v4(a), v4(WL + (ks * 3 + mt) * 4), v4(cf + 4 * ks), v4(a))


def run(items):
    for kind, s, tag in items:
        if kind == "vm":
            g.vmem(s, tag)
        elif kind == "vmx":
            e("s_mov_b64 exec, 0xffffffff")
            g.vmem(s, tag)
            e("s_mov_b64 exec, -1")
        elif kind == "vm8":
            e("s_mov_b64 exec, 0xff")
            g.vmem(s, tag)
            e("s_mov_b64 exec, -1")
        elif kind == "ds":
            g.ds(s, tag)
        elif kind == "wvm":
            g.wait(vm=tag)
        elif kind == "wlg":
            g.wait(lg=tag)
        else:
            e(s)


def w_dma(srd_reg, row, tau, tag):
    r = []
    r.append(("i", "s_add_u32 m0, s%d, %d" % (sLoW, row * ROWB), None))
    if tau is None:
        r.append(("i", "s_mov_b32 s%d, s%d" % (sT[7], sGoW), None))
    else:
        r.append(("i", "s_add_u32 s%d, s%d, %d" % (sT[7], sGoW, tau * 18432), None))
        if tau // 3 == 0:
            r.append(("i", "s_add_u32 s%d, s%d, s%d" % (sT[7], sT[7], sFlW), None))
        elif tau // 3 == 2:
            r.append(("i", "s_sub_u32 s%d, s%d, s%d" % (sT[7], sT[7], sFlW), None))
    for k in range(4):
        r.append(("vm", "buffer_load_dwordx4 v%d, s[%d:%d], s%d offen offset:%d lds" % (
            vD, srd_reg, srd_reg + 3, sT[7], 1024 * k), tag))
    r.append(("i", "s_add_u32 m0, m0, 4096", None))
    r.append(("i", "s_add_u32 s%d, s%d, 4096" % (sT[7], sT[7]), None))
    r.append(("vmx", "buffer_load_dwordx4 v%d, s[%d:%d], s%d offen lds" % (vD, srd_reg, srd_reg + 3, sT[7]), tag))
    return r


def raw_dma(tag):
    r = []
    r.append(("i", "s_add_u32 m0, s%d, s%d" % (sLoW, sRow), None))
    r.append(("i", "s_nop 0", None))
    for k in range(4):
        r.append(("vm", "buffer_load_dwordx4 v%d, s[%d:%d], s%d offen offset:%d nt lds" % (
            vD, S_CF, S_CF + 3, sCFd, 1024 * k), tag))
    r.append(("i", "s_add_u32 m0, m0, 4096", None))
    r.append(("i", "s_add_u32 s%d, s%d, 4096" % (sT[7], sCFd), None))
    r.append(("vmx", "buffer_load_dwordx4 v%d, s[%d:%d], s%d offen nt lds" % (vD, S_CF, S_CF + 3, sT[7]), tag))
    return r


def raw_adv():
    return [("i", "s_add_u32 s%d, s%d, s%d" % (sCFd, sCFd, sDirR), None),
            ("i", "s_add_u32 s%d, s%d, %d" % (sRow, sRow, 2 * ROWB), None)]


def p_dma(tag):
    r = []
    r.append(("i", "s_add_u32 m0, s%d, s%d" % (sPl, sPw1), None))
    r.append(("i", "s_add_u32 s%d, s%d, s%d" % (sT[7], sPg, sPw1), None))
    r.append(("vm", "buffer_load_dwordx4 v%d, s[%d:%d], s%d offen nt lds" % (vD, S_P, S_P + 3, sT[7]), tag))
    r.append(("i", "s_add_u32 m0, s%d, s%d" % (sPl, sPw2), None))
    r.append(("i", "s_add_u32 s%d, s%d, s%d" % (sT[7], sPg, sPw2), None))
    r.append(("vm8", "buffer_load_dwordx4 v%d, s[%d:%d], s%d offen nt lds" % (vD, S_P, S_P + 3, sT[7]), tag))
    return r


def p_adv():
    return [("i", "s_add_u32 s%d, s%d, s%d" % (sPg, sPg, sDirP), None),
            ("i", "s_add_u32 s%d, s%d, 4608" % (sPl, sPl), None),
            ("i", "s_cmp_eq_u32 s%d, %d" % (sPl, PS0 + 6 * 4608), None),
            ("i", "s_cselect_b32 s%d, %d, s%d" % (sPl, PS0, sPl), None)]


def tr_items(regfn, tag):
    r = []
    for ks in range(3):
        for mt in range(3):
            for half in range(2):
                co = 8 * mt if mt < 2 else 0
                if ks == 0:
                    a, o = (vTa if mt < 2 else vTa2), 768 * half + co
                elif ks == 1:
                    a, o = (vTm if mt < 2 else vTm2), 6144 + 768 * half + co
                else:
                    a, o = (vTa if mt < 2 else vTa2), ROWB + 3072 + 768 * half + co
                r.append(("ds", "ds_read_b64_tr_b16 %s, v%d offset:%d" % (regfn(ks, mt, half), a, o), tag))
    return r


trrow = [WLROW]


def tr_goto(row):
    d = (row - trrow[0]) * ROWB
    trrow[0] = row
    if d == 0:
        return []
    return [("i", "v_add_u32 v%d, 0x%x, v%d" % (x, d & 0xffffffff, x), None) for x in (vTa, vTm, vTa2, vTm2)]


def read_wl():
    run(tr_goto(WLROW))
    run(tr_items(lambda ks, mt, half: v2(WL + (ks * 3 + mt) * 4 + 2 * half), "wf"))


def read_tap(tau):
    run(tr_goto(TAPROW[tau]))
    run(tr_items(lambda ks, mt, half: wreg_half((tau * 3 + ks) * 3 + mt, half), "wf"))


def pack_items(a):
    return [("i", "v_cvt_pk_bf16_f32 v%d, v%d, v%d" % (a, a, a + 1), None),
            ("i", "v_cvt_pk_bf16_f32 v%d, v%d, v%d" % (a + 1, a + 2, a + 3), None),
            ("i", "v_cvt_pk_bf16_f32 v%d, v%d, v%d" % (a + 2, a + 4, a + 5), None),
            ("i", "v_cvt_pk_bf16_f32 v%d, v%d, v%d" % (a + 3, a + 6, a + 7), None),
            ("i", "v_cvt_pk_bf16_f32 v%d, v%d, v%d" % (a + 8, a + 8, a + 9), None),
            ("i", "v_cvt_pk_bf16_f32 v%d, v%d, v%d" % (a + 9, a + 10, a + 11), None)]


def raw_reads(cf, off, tag):
    r = []
    for t in range(3):
        for ks in range(3):
            r.append(("ds", "ds_read_b128 %s, v%d offset:%d" % (
                v4(cf + (t * 3 + ks) * 4), vCR, off + t * 3072 + 64 * ks), tag))
    return r


def p_reads(off, tag):
    r = []
    for t in range(3):
        r.append(("ds", "ds_read_b128 %s, v%d offset:%d" % (v4(PV + t * 6), vP, off + 1536 * t), tag))
        r.append(("ds", "ds_read_b64 %s, v%d offset:%d" % (v2(PV + t * 6 + 4), vP2, off + 1536 * t), tag))
    return r


def main():
    hdr = open("cdna_kernels/%s.s.ref" % NAME).read().split("\n")
    for ln in hdr:
        if ln.startswith("; @launch"):
            break
        g.out.append(ln)
    g.out.append("; @launch grid=(256,1,1) block=(256,1,1) lds=%d" % LDS_TOTAL)
    g.out.append('.amdgcn_target "amdgcn-amd-amdhsa--gfx950"')
    g.out.append(".text")
    g.out.append(".globl %s_kernel" % NAME)
    g.out.append(".p2align 8")
    g.out.append(".type %s_kernel,@function" % NAME)
    g.label("%s_kernel" % NAME)

    e("s_cmp_ge_u32 s2, 256")
    e("s_cbranch_scc1 L_end")
    e("s_load_dwordx8 s[40:47], s[0:1], 0")
    e("s_load_dwordx2 s[48:49], s[0:1], 32")
    stamp()
    vL, vN, vQ, vT0, vT1, vT2, vT3, vT4 = 244, 245, 246, 247, 248, 249, 250, 251
    CF2 = 12
    HCF, HPV = 48, 60
    vHc, vHp, vHp2, vHw, vHw2 = 66, 67, 68, 69, 70
    LACC2 = 244
    e("v_and_b32 v%d, 63, v0" % vL)
    e("v_lshrrev_b32 v%d, 6, v0" % vT0)
    e("v_and_b32 v%d, 15, v%d" % (vN, vL))
    e("v_lshrrev_b32 v%d, 4, v%d" % (vQ, vL))
    e("v_readfirstlane_b32 s%d, v%d" % (sW, vT0))
    e("v_lshlrev_b32 v%d, 4, v%d" % (vD, vL))
    e("s_nop 2")
    e("s_and_b32 s%d, s%d, 1" % (sH, sW))
    e("s_lshr_b32 s%d, s%d, 1" % (sS, sW))
    e("s_lshr_b32 s%d, s2, 3" % sBY)
    e("s_and_b32 s%d, s2, 7" % sBX)
    e("s_mul_i32 s%d, s%d, 12" % (sY0, sBY))
    e("s_mul_i32 s%d, s%d, 9216" % (sT[0], sBX))
    e("s_mul_i32 s%d, s%d, 96" % (sT[1], sH))
    e("s_mul_i32 s%d, s%d, %d" % (sT[2], sS, ROWB))
    e("s_mul_i32 s%d, s%d, 4608" % (sT[3], sBX))
    e("s_mul_i32 s%d, s%d, 4608" % (sGoW, sW))
    e("s_mul_i32 s%d, s%d, 4608" % (sLoW, sH))
    e("s_add_u32 s%d, s%d, s%d" % (sLoW, sLoW, sT[2]))
    e("s_add_u32 s%d, s%d, 192" % (sLoW, sLoW))
    e("s_lshl_b32 s%d, s%d, 10" % (sPw1, sW))
    e("s_lshl_b32 s%d, s%d, 7" % (sPw2, sW))
    e("s_add_u32 s%d, s%d, 4096" % (sPw2, sPw2))
    e("s_waitcnt lgkmcnt(0)")
    srd(S_CF, 40, 28311552)
    srd(S_P, 42, 7077888)
    srd(S_WL, 44, 18432)
    srd(S_W, 46, 165888)
    srd(S_O, 48, 28311552)
    flip_src = "s_and_b32 s%d, s%d, 1" % (sF, sBY)
    if "noflip" in EXP:
        flip_src = "s_mov_b32 s%d, 0" % sF
    e(flip_src)
    e("s_mul_i32 s%d, s%d, 110592" % (sFlW, sF))
    e("s_lshl_b32 s%d, s%d, 1" % (sDir, sF))
    e("s_sub_u32 s%d, 1, s%d" % (sDir, sDir))
    e("s_mul_i32 s%d, s%d, 13" % (sYb, sF))
    e("s_add_u32 s%d, s%d, s%d" % (sYb, sYb, sY0))
    e("s_sub_u32 s%d, s%d, 1" % (sYb, sYb))
    e("s_mul_i32 s%d, s%d, %d" % (sDirR, sDir, 2 * 73728))
    e("s_mul_i32 s%d, s%d, 36864" % (sDirP, sDir))
    e("s_mul_i32 s%d, s%d, s%d" % (sT[4], sDir, sS))
    e("s_add_u32 s%d, s%d, s%d" % (sT[4], sT[4], sYb))
    e("s_mul_i32 s%d, s%d, 73728" % (sCFd, sT[4]))
    e("s_mul_i32 s%d, s%d, 4608" % (sT[5], sH))
    e("s_add_u32 s%d, s%d, s%d" % (sCFd, sCFd, sT[5]))
    e("s_add_u32 s%d, s%d, s%d" % (sCFd, sCFd, sT[0]))
    e("s_mov_b32 s%d, 0" % sRow)
    e("s_mul_i32 s%d, s%d, 6" % (sT[5], sBY))
    e("s_mul_i32 s%d, s%d, 7" % (sT[6], sF))
    e("s_add_u32 s%d, s%d, s%d" % (sT[5], sT[5], sT[6]))
    e("s_sub_u32 s%d, s%d, 1" % (sT[5], sT[5]))
    e("s_mul_i32 s%d, s%d, 36864" % (sPg, sT[5]))
    e("s_add_u32 s%d, s%d, s%d" % (sPg, sPg, sT[3]))
    e("s_mov_b32 s%d, %d" % (sPl, PS0))
    e("s_add_u32 s%d, s%d, s%d" % (sT[6], sT[4], sDir))
    e("s_mul_i32 s%d, s%d, 73728" % (sO[0], sT[6]))
    e("s_add_u32 s%d, s%d, 3072" % (sO[1], sO[0]))
    e("s_add_u32 s%d, s%d, 6144" % (sO[2], sO[0]))
    e("s_sub_u32 s%d, s%d, s%d" % (sO[2], sO[2], sDirR))

    run(w_dma(S_WL, WLROW, None, "a"))
    e("s_mov_b32 s%d, s%d" % (sT[6], sCFd))
    e("s_cmp_lt_i32 s%d, 0" % sCFd)
    e("s_cselect_b32 s%d, 0x%x, s%d" % (sCFd, OOB, sCFd))
    run(raw_dma("a"))
    e("s_mov_b32 s%d, s%d" % (sCFd, sT[6]))
    run(raw_adv())
    e("s_mov_b32 s%d, s%d" % (sT[6], sPg))
    e("s_cmp_lt_i32 s%d, 0" % sPg)
    e("s_cselect_b32 s%d, 0x%x, s%d" % (sPg, OOB, sPg))
    run(p_dma("a"))
    e("s_mov_b32 s%d, s%d" % (sPg, sT[6]))
    run(p_adv())
    run(p_dma("a"))
    run(p_adv())
    run(raw_dma("b"))
    run(raw_adv())
    run(p_dma("b"))
    run(p_adv())

    e("v_mul_u32_u24 v%d, 192, v%d" % (vT0, vN))
    e("v_lshl_add_u32 v%d, v%d, 4, v%d" % (vT1, vQ, vT0))
    e("v_add_u32 v%d, s%d, v%d" % (vO, sT[0], vT1))
    e("v_add_u32 v%d, s%d, v%d" % (vO, sT[1], vO))
    e("v_add_u32 v%d, s%d, v%d" % (vCR, sT[2], vT1))
    e("v_add_u32 v%d, 192, v%d" % (vCR, vCR))
    e("v_lshrrev_b32 v%d, 1, v%d" % (vT1, vN))
    e("v_mul_u32_u24 v%d, 192, v%d" % (vT1, vT1))
    e("s_mul_i32 s%d, s%d, 4608" % (sT[5], sS))
    e("s_add_u32 s%d, s%d, %d" % (sT[5], sT[5], PS0))
    e("s_add_u32 s%d, s%d, s%d" % (sT[5], sT[5], sT[1]))
    e("v_add_u32 v%d, s%d, v%d" % (vT1, sT[5], vT1))
    e("v_lshl_add_u32 v%d, v%d, 4, v%d" % (vP, vQ, vT1))
    e("v_lshl_add_u32 v%d, v%d, 3, v%d" % (vP2, vQ, vT1))
    e("v_add_u32 v%d, 64, v%d" % (vP2, vP2))
    e("s_mul_i32 s%d, s%d, 48" % (sT[4], sBX))
    e("s_mul_i32 s%d, s%d, 49" % (sT[5], sS))
    e("s_add_u32 s%d, s%d, s%d" % (sT[4], sT[4], sT[5]))
    e("s_sub_u32 s%d, s%d, 1" % (sT[4], sT[4]))
    e("v_mul_lo_u32 v%d, v%d, s%d" % (vT1, vN, sDir))
    e("v_add_u32 v%d, s%d, v%d" % (vT1, sYb, vT1))
    e("v_cmp_gt_u32 vcc, 0x180, v%d" % vT1)
    e("v_cmp_gt_u32 s[44:45], 14, v%d" % vN)
    e("s_and_b64 vcc, vcc, s[44:45]")
    e("s_cmp_lt_u32 s%d, 384" % sT[4])
    e("s_cselect_b64 s[46:47], -1, 0")
    e("s_and_b64 vcc, vcc, s[46:47]")
    e("v_mul_u32_u24 v%d, 384, v%d" % (vT2, vT1))
    e("v_add_u32 v%d, s%d, v%d" % (vT2, sT[4], vT2))
    e("v_mul_u32_u24 v%d, 192, v%d" % (vT2, vT2))
    e("v_lshl_add_u32 v%d, v%d, 4, v%d" % (vT2, vQ, vT2))
    e("v_mov_b32 v%d, 0x%x" % (vT3, OOB))
    e("v_cndmask_b32 v%d, v%d, v%d, vcc" % (vHc, vT3, vT2))
    e("v_lshrrev_b32 v%d, 1, v%d" % (vT2, vT1))
    e("v_mul_u32_u24 v%d, 192, v%d" % (vT2, vT2))
    e("s_lshr_b32 s%d, s%d, 1" % (sT[5], sT[4]))
    e("v_add_u32 v%d, s%d, v%d" % (vT2, sT[5], vT2))
    e("v_mul_u32_u24 v%d, 192, v%d" % (vT2, vT2))
    e("v_add_u32 v%d, s%d, v%d" % (vT2, sT[1], vT2))
    e("v_lshl_add_u32 v%d, v%d, 4, v%d" % (vT4, vQ, vT2))
    e("v_cndmask_b32 v%d, v%d, v%d, vcc" % (vHp, vT3, vT4))
    e("v_lshl_add_u32 v%d, v%d, 3, v%d" % (vT4, vQ, vT2))
    e("v_add_u32 v%d, 64, v%d" % (vT4, vT4))
    e("v_cndmask_b32 v%d, v%d, v%d, vcc" % (vHp2, vT3, vT4))
    e("v_mul_u32_u24 v%d, %d, v%d" % (vT2, ROWB, vN))
    e("s_mul_i32 s%d, s%d, %d" % (sT[5], sS, 49 * 192))
    e("v_add_u32 v%d, s%d, v%d" % (vT2, sT[5], vT2))
    e("v_mov_b32 v%d, 0x%x" % (vT3, DUMMY))
    e("v_cndmask_b32 v%d, v%d, v%d, s[44:45]" % (vT2, vT3, vT2))
    e("v_add_u32 v%d, s%d, v%d" % (vT2, sT[1], vT2))
    e("v_lshl_add_u32 v%d, v%d, 4, v%d" % (vHw, vQ, vT2))
    e("v_lshl_add_u32 v%d, v%d, 3, v%d" % (vHw2, vQ, vT2))
    e("v_add_u32 v%d, 64, v%d" % (vHw2, vHw2))
    for d in range(3):
        e("v_add_u32 v%d, %d, v%d" % (vT1, d, vN))
        e("v_bfe_u32 v%d, v%d, 2, 1" % (vT2, vT1))
        e("v_lshlrev_b32 v%d, 5, v%d" % (vT2, vT2))
        e("v_lshlrev_b32 v%d, 4, v%d" % (vT3, vQ))
        e("v_xor_b32 v%d, v%d, v%d" % (vT2, vT2, vT3))
        e("v_mul_u32_u24 v%d, 192, v%d" % (vT1, vT1))
        e("v_add3_u32 v%d, v%d, v%d, s%d" % (vB[d], vT1, vT2, sT[2]))
    e("v_add_u32 v%d, 1, v%d" % (vT1, vN))
    e("v_bfe_u32 v%d, v%d, 2, 1" % (vT2, vT1))
    e("v_lshlrev_b32 v%d, 5, v%d" % (vT2, vT2))
    e("v_mul_u32_u24 v%d, 192, v%d" % (vT1, vT1))
    e("v_lshlrev_b32 v%d, 4, v%d" % (vT3, vQ))
    e("v_add_u32 v%d, s%d, v%d" % (vT3, sT[1], vT3))
    e("v_xor_b32 v%d, v%d, v%d" % (vT3, vT3, vT2))
    e("v_add3_u32 v%d, v%d, v%d, s%d" % (vWr[0], vT1, vT3, sT[2]))
    e("v_lshlrev_b32 v%d, 3, v%d" % (vT3, vQ))
    e("v_add_u32 v%d, s%d, v%d" % (vT3, sT[1], vT3))
    e("v_add_u32 v%d, 64, v%d" % (vT3, vT3))
    e("v_xor_b32 v%d, v%d, v%d" % (vT3, vT3, vT2))
    e("v_add3_u32 v%d, v%d, v%d, s%d" % (vWr[1], vT1, vT3, sT[2]))
    e("v_lshrrev_b32 v%d, 2, v%d" % (vT1, vN))
    e("v_lshl_add_u32 v%d, v%d, 3, v%d" % (vT1, vQ, vT1))
    e("v_mul_u32_u24 v%d, 192, v%d" % (vT1, vT1))
    e("v_add_u32 v%d, s%d, v%d" % (vT1, sT[1], vT1))
    e("v_add_u32 v%d, 0x%x, v%d" % (vT1, WLROW * ROWB + 192, vT1))
    e("v_and_b32 v%d, 3, v%d" % (vT2, vN))
    e("v_lshl_add_u32 v%d, v%d, 4, v%d" % (vTa, vT2, vT1))
    e("v_lshl_add_u32 v%d, v%d, 3, v%d" % (vTa2, vT2, vT1))
    e("v_add_u32 v%d, 64, v%d" % (vTa2, vTa2))
    e("v_lshrrev_b32 v%d, 1, v%d" % (vT2, vQ))
    e("v_mul_u32_u24 v%d, 384, v%d" % (vT2, vT2))
    e("v_add_u32 v%d, v%d, v%d" % (vTm, vTa, vT2))
    e("v_add_u32 v%d, v%d, v%d" % (vTm2, vTa2, vT2))
    stamp()

    def issue_halo():
        for ks in range(3):
            g.vmem("buffer_load_dwordx4 %s, v%d, s[%d:%d], 0 offen offset:%d" % (
                v4(HCF + 4 * ks), vHc, S_CF, S_CF + 3, 64 * ks), "h")
        g.vmem("buffer_load_dwordx4 %s, v%d, s[%d:%d], 0 offen" % (v4(HPV), vHp, S_P, S_P + 3), "h")
        g.vmem("buffer_load_dwordx2 %s, v%d, s[%d:%d], 0 offen" % (v2(HPV + 4), vHp2, S_P, S_P + 3), "h")

    def issue_unit(tag):
        run(raw_dma(tag))
        run(raw_adv())
        run(p_dma(tag))
        run(p_adv())

    def bar():
        e("s_barrier")

    def front():
        trrow[0] = WLROW
        issue_halo()
        NT0 = int(os.environ.get("NT0", "0"))
        for tau in range(NT0):
            run(w_dma(S_W, TAPROW[tau], tau, "t%d" % tau))
        stamp(2)
        g.wait(vm="a")
        bar()
        stamp(3)
        pr = p_reads(0, "x")
        rr = raw_reads(CF, 0, "x")
        run([(k, a, "p0") for (k, a, _) in pr])
        run([(k, a, "c0") for (k, a, _) in rr[:3]])
        read_wl()
        run([(k, a, "c1") for (k, a, _) in rr[3:]])

        tiles = []
        for t in range(3):
            tiles.append((CF + t * 12, PV + t * 6, vWr, t * 3072))
        tiles.append((HCF, HPV, [vHw, vHw2], 0))
        for t in range(3):
            tiles.append((CF2 + t * 12, PV + t * 6, vWr, 2 * ROWB + t * 3072))
        accs = [LACC, LACC2]

        def fin_items(i):
            cf, pv, wa, wo = tiles[i]
            a = accs[i % 2]
            r = pack_items(a)
            r.append(("ds", "ds_write_b128 v%d, %s offset:%d" % (wa[0], v4(a), wo), "w"))
            r.append(("ds", "ds_write_b64 v%d, %s offset:%d" % (wa[1], v2(a + 8), wo), "w"))
            return r

        g.wait(lg="p0")
        for s_ in lat_init(accs[0], tiles[0][1]):
            e(s_)
        g.wait(lg="wf")
        for i in range(len(tiles)):
            cf, pv, wa, wo = tiles[i]
            acc = accs[i % 2]
            gaps = defaultdict(list)
            if i == 1:
                gaps[2] += [("wlg", None, "c1"), ("wvm", None, "b"), ("i", "s_barrier", None)]
                gaps[2] += raw_reads(CF2, 2 * ROWB, "c2")[:5]
                gaps[3] += raw_reads(CF2, 2 * ROWB, "c2")[5:]
            if i == 5:
                gaps[2] += [("i", "s_barrier", None)]
            if i > 0:
                f = fin_items(i - 1)
                gaps[4] += f[:4]
                gaps[5] += f[4:]
            if i == 2:
                gaps[6] += p_reads(4608, "p1")
            if NT0 + i < 4:
                gaps[9] += w_dma(S_W, TAPROW[NT0 + i], NT0 + i, "t%d" % (NT0 + i))
            if i + 1 < len(tiles):
                ini = [("i", s_, None) for s_ in lat_init(accs[(i + 1) % 2], tiles[i + 1][1])]
                if i + 1 == 3:
                    ini = [("wvm", None, "h")] + ini
                if i + 1 == 4:
                    ini = [("wlg", None, "p1")] + ini
                gaps[6] += ini[:5]
                gaps[7] += ini[5:9]
                gaps[8] += ini[9:]
            if i == 1:
                g.wait(lg="c1")
            if i == 4:
                g.wait(lg="c2")
            k = 0
            for ks in range(3):
                for mt in range(3):
                    e(lat_mfma(acc, cf, ks, mt))
                    k += 1
                    run(gaps[k])
            e("s_nop 0")
        e("s_nop 7")
        run(fin_items(len(tiles) - 1))
        stamp(4)
        issue_unit("u2")
        g.wait(vm="t0", lg="w")
        bar()
        read_tap(0)
        stamp(5)

    front()

    for x in vWr + [vCR]:
        e("v_add_u32 v%d, %d, v%d" % (x, 4 * ROWB, x))
    e("v_add_u32 v%d, %d, v%d" % (vP, 2 * 4608, vP))
    e("v_add_u32 v%d, %d, v%d" % (vP2, 2 * 4608, vP2))
    e("s_add_u32 s%d, s%d, 2" % (sPi, sS))
    e("s_add_u32 s%d, s%d, s%d" % (sO[2], sO[2], sDirR))

    def slot_tk(sig, kouter):
        return (sig % 3, sig // 3) if kouter else (sig // 27, sig % 27)

    def bread(sig, bias, kouter=False):
        t, kap = slot_tk(sig, kouter)
        tau, ks = kap // 3, kap % 3
        di, dj = tau // 3, tau % 3
        off = di * ROWB + t * 3072 + 64 * ks + bias
        return "ds_read_b128 %s, v%d offset:%d" % (v4(BBUF[sig % 9]), vB[dj], off)

    for sig in range(LEAD):
        g.ds(bread(sig, 0, True), "B%d" % sig)

    def drain_items(t, part, so=None):
        a = ACC + t * 12
        p = pack_items(a)
        so = sO[t] if so is None else so
        if "nost" in EXP:
            return p[:4] if part == 0 else p[4:]
        if part == 0:
            return p[:4] + [("vm", "buffer_store_dwordx4 %s, v%d, s[%d:%d], s%d offen" % (
                v4(a), vO, S_O, S_O + 3, so), "st")]
        return p[4:] + [("vm", "buffer_store_dwordx2 %s, v%d, s[%d:%d], s%d offen" % (
            v2(a + 8), vO2, S_O, S_O + 3, so), "st")]

    def adv_o(t):
        return [("i", "s_add_u32 s%d, s%d, s%d" % (sO[t], sO[t], sDirR), None)]

    def step(first, lateral, last):
        kouter = first
        pre = defaultdict(list)
        mid = defaultdict(list)
        LB = [12, 34, 56]
        comp = False
        post = []
        if not first:
            for t in range(3):
                tp = (t + 2) % 3
                d0 = drain_items(tp, 0)
                d1 = drain_items(tp, 1)
                mid[27 * t + 3] += d0[:2]
                mid[27 * t + 4] += d0[2:4]
                mid[27 * t + 5] += d0[4:]
                mid[27 * t + 7] += d1[:2]
                mid[27 * t + 8] += d1[2:]
                mid[27 * t + 9] += adv_o(tp)
            if lateral:
                rr = raw_reads(CF, 0, "rr")
                pr = p_reads(0, "rr")
                seq = []
                for t in range(3):
                    seq += [(k, a, "rr%d" % t) for (k, a, _) in pr[2 * t:2 * t + 2] + rr[3 * t:3 * t + 3]]
                for i, it in enumerate(seq):
                    mid[2 + i].append(it)
                for t in range(3):
                    pre[LB[t]].append(("wlg", None, "rr%d" % t))
                pre[26].append(("wlg", None, "rr2"))
                pre[26].append(("i", "s_barrier", None))
                mid[27].append(("i", "s_cmp_ge_u32 s%d, 2" % sLoop, None))
                mid[27].append(("i", "s_cselect_b32 s%d, 0x%x, s%d" % (sCFd, OOB, sCFd), None))
                mid[27].append(("i", "s_cselect_b32 s%d, 0x%x, s%d" % (sRow, LDS_DROP, sRow), None))
                mid[27].append(("i", "s_cselect_b32 s%d, 0x%x, s%d" % (sPg, OOB, sPg), None))
                mid[27].append(("i", "s_cselect_b32 s%d, 0x%x, s%d" % (sPl, LDS_DROP, sPl), None))
                dm = raw_dma("u") + raw_adv() + p_dma("u") + p_adv()
                pos = 38
                for it in dm:
                    mid[pos].append(it)
                    if it[0] in ("vm", "vmx", "vm8"):
                        pos += 2
        else:
            comp = True
            LB = [38, 50, 62]
            rr = raw_reads(CF, 0, "rr") + p_reads(0, "rr")
            for i, it in enumerate(rr):
                mid[28 + i // 2].append(it)
            dm = raw_dma("u")
            mid[48] += dm[:4]
            mid[49] += dm[4:]
            mid[50] += raw_adv()
            dm = p_dma("u")
            mid[51] += dm[:3]
            mid[52] += dm[3:]
            mid[53] += p_adv()
            dm = raw_dma("u")
            mid[66] += dm[:4]
            mid[67] += dm[4:]
            mid[68] += raw_adv()
            dm = p_dma("u")
            mid[69] += dm[:3]
            mid[70] += dm[3:]
            mid[71] += p_adv()
            for tau in range(1, 9):
                p = 9 * (tau - 1) + 1
                if "s0nowait" not in EXP:
                    pre[p].append(("wvm", None, "t%d" % tau))
                if tau == 4:
                    pre[p].append(("wvm", None, "u2"))
                if tau == 5:
                    pre[p].append(("wlg", None, "rr"))
                if "s0nobar" not in EXP:
                    pre[p].append(("i", "s_barrier", None))
                pre[p] += tr_goto(TAPROW[tau])
                tr = tr_items(lambda ks, mt, half, tau=tau: wreg_half((tau * 3 + ks) * 3 + mt, half), "wf%d" % tau)
                if "s0notr" in EXP:
                    tr = tr[:1]
                for i, it in enumerate(tr):
                    mid[p + i // 3].append(it)
                if tau in TAP_ISSUE:
                    nt = TAP_ISSUE[tau]
                    dm = w_dma(S_W, TAPROW[nt], nt, "t%d" % nt)
                    mid[p] = dm[:5] + mid[p]
                    mid[p + 1] = dm[5:] + mid[p + 1]
            pre[0].append(("wlg", None, "wf"))
            for tau in range(1, 9):
                pre[9 * tau].append(("wlg", None, "wf%d" % tau))
        if lateral:
            for t in range(3):
                b = LB[t]
                init = lat_init(LACC, PV + t * 6)
                ni, nm = (6, 2) if comp else (4, 1)
                for i, s_ in enumerate(init):
                    mid[b + i // ni].append(("i", s_, None))
                b1 = b + 12 // ni
                k = 0
                for ks in range(3):
                    for mt in range(3):
                        mid[b1 + k // nm].append(("lm", lat_mfma(LACC, CF + t * 12, ks, mt), None))
                        k += 1
                b2 = b1 + (8 // nm) + 3
                pk = pack_items(LACC)
                mid[b2] += pk[:4]
                mid[b2 + 1].append(("ds", "ds_write_b128 v%d, %s offset:%d" % (vWr[0], v4(LACC), t * 3072), "w"))
                mid[b2 + 1] += pk[4:]
                mid[b2 + 2].append(("ds", "ds_write_b64 v%d, %s offset:%d" % (vWr[1], v2(LACC + 8), t * 3072), "w"))
            post = [("i", "v_add_u32 v%d, %d, v%d" % (x, 2 * ROWB, x), None) for x in vWr + [vCR]]
            mid[76] += [("i", "s_mov_b32 s%d, 4608" % sT[5], None),
                        ("i", "s_add_u32 s%d, s%d, 1" % (sPi, sPi), None),
                        ("i", "s_cmp_eq_u32 s%d, 6" % sPi, None),
                        ("i", "s_cselect_b32 s%d, 0x%x, s%d" % (sT[5], (-5 * 4608) & 0xffffffff, sT[5]), None)]
            mid[78] += [("i", "v_add_u32 v%d, s%d, v%d" % (vP, sT[5], vP), None),
                        ("i", "v_add_u32 v%d, s%d, v%d" % (vP2, sT[5], vP2), None)]
        for sig in range(81):
            t, kap = slot_tk(sig, kouter)
            if "s0" in EXP and first and sig % 9 == 0:
                stamp(10 + sig // 9)
            if "inloop" in EXP and (not first) and lateral and sig in (0, 2, 8, 9, 15, 27, 34, 54, 56, 73, 80):
                k_ = 10 + (0, 2, 8, 9, 15, 27, 34, 54, 56, 73, 80).index(sig)
                nst[0] = max(nst[0], k_ + 1)
                e("s_memtime s[100:101]")
                e("s_waitcnt lgkmcnt(0)")
                e("s_cmp_eq_u32 s%d, 1" % sLoop)
                e("s_cselect_b32 s%d, s100, s%d" % (ST0 + k_, ST0 + k_))
            run(pre[sig])
            g.wait(lg="B%d" % (sig % 9))
            items = [x for x in mid[sig] if x[0] != "lm"]
            lms = [x for x in mid[sig] if x[0] == "lm"]
            n = len(items)
            n1 = (n + 2) // 3
            n0 = (n - n1) // 2
            cuts = [0, n0, n0 + n1, n]
            nxt = sig + LEAD
            for mt in range(3):
                a = ACC + (t * 3 + mt) * 4
                c = "0" if kap == 0 else v4(a)
                e("v_mfma_f32_16x16x32_bf16 %s, %s, %s, %s" % (v4(a), wreg(kap * 3 + mt), v4(BBUF[sig % 9]), c))
                if mt == 0:
                    if nxt == 9 and not first:
                        g.wait(lg="w", vm="u" if lateral else None, oldest=True)
                        e("s_barrier")
                    if nxt < 81:
                        g.ds(bread(nxt, 0, kouter), "B%d" % (nxt % 9))
                    elif not last:
                        g.ds(bread(nxt - 81, 2 * ROWB), "B%d" % (nxt % 9))
                run(items[cuts[mt]:cuts[mt + 1]])
            for x in lms:
                e(x[1])
        run(post)
        if not last:
            for d in range(3):
                e("v_add_u32 v%d, %d, v%d" % (vB[d], 2 * ROWB, vB[d]))
        if first:
            e("v_sub_u32 v%d, v%d, v%d" % (vTa, vP2, vP))
            e("v_add_u32 v%d, v%d, v%d" % (vO2, vO, vTa))
            for t in range(2):
                run(drain_items(t, 0))
                run(drain_items(t, 1))
                run(adv_o(t))

    step(first=True, lateral=True, last=False)
    stamp(6)
    e("s_mov_b32 s%d, 0" % sLoop)
    g.label("L_loop")
    base = len(g.out)
    bodies = []
    n = 0
    while True:
        st_in = (list(g.lg), list(g.vm))
        del g.out[base:]
        step(first=False, lateral=True, last=False)
        bodies.append(g.out[base:])
        n += 1
        if (g.lg, g.vm) == st_in:
            break
        assert n < 8
    for other in bodies[:-1]:
        assert len(other) == len(bodies[-1])
        for a, b in zip(other, bodies[-1]):
            if isinstance(a, Wait):
                b.merge(a)
            else:
                assert a == b
    e("s_add_u32 s%d, s%d, 1" % (sLoop, sLoop))
    e("s_cmp_lt_u32 s%d, 4" % sLoop)
    e("s_cbranch_scc1 L_loop")
    stamp(7)
    step(first=False, lateral=False, last=True)
    e("s_nop 7")
    run(drain_items(2, 0))
    run(drain_items(2, 1))
    if STAMPS:
        stamp(8)
        g.drain(vm=True)
        stamp(9)
        e("s_load_dwordx2 s[40:41], s[0:1], 48")
        e("s_waitcnt lgkmcnt(0)")
        srd(S_CF, 40, 268435456)
        e("s_lshl_b32 s%d, s2, 2" % sT[0])
        e("s_add_u32 s%d, s%d, s%d" % (sT[0], sT[0], sW))
        e("s_lshl_b32 s%d, s%d, 7" % (sT[0], sT[0]))
        e("v_mov_b32 v1, 0")
        for i in range(nst[0]):
            e("v_mov_b32 v2, s%d" % (ST0 + i))
            e("buffer_store_dword v2, v1, s[%d:%d], s%d offen offset:%d" % (S_CF, S_CF + 3, sT[0], 4 * i))
        print("stamps:", nst[0])
    g.label("L_end")
    e("s_endpgm")
    g.out.append('.section .rodata,"a"')
    g.out.append(".p2align 6")
    g.out.append(".amdhsa_kernel %s_kernel" % NAME)
    g.out.append("  .amdhsa_next_free_vgpr 512")
    g.out.append("  .amdhsa_next_free_sgpr 102")
    g.out.append("  .amdhsa_accum_offset 256")
    g.out.append("  .amdhsa_group_segment_fixed_size 0")
    g.out.append("  .amdhsa_kernarg_size 56")
    g.out.append("  .amdhsa_user_sgpr_count 2")
    g.out.append("  .amdhsa_user_sgpr_kernarg_segment_ptr 1")
    g.out.append("  .amdhsa_system_sgpr_workgroup_id_x 1")
    g.out.append(".end_amdhsa_kernel")
    outp = sys.argv[1] if len(sys.argv) > 1 else "cdna_kernels/%s.s" % NAME
    open(outp, "w").write(g.text())
    print("wrote", outp)


main()
```

```python
import sys, os
from collections import defaultdict

NAME = "standalone__detection_seg_fpn_lateral__vision"

ROWB = 9600
PB = 14 * ROWB
DUMMY = PB
PS0 = PB + 192
LDS_TOTAL = 163840
OOB = 0x40000000
LDS_DROP = 0x30000
SLOT = [4, 6, 8, 10, 12]
WLROW = SLOT[0]
TAPROW = [12, 10, 8, 6, 12, 10, 8, 12, 10]
TAP_ISSUE = {1: 4, 2: 5, 3: 6, 5: 7, 6: 8}

S_CF, S_P, S_WL, S_W, S_O = 4, 8, 12, 16, 20
sW, sH, sS, sBY, sBX, sY0 = 24, 25, 26, 27, 28, 29
sCFd, sRow, sPg, sPl = 30, 31, 32, 33
sO = [34, 35, 36]
sLoop = 37
sT = [38, 39, 50, 51, 52, 53, 54, 55]
sFlW, sDirR, sDirP, sPi = 56, 57, 58, 59
sLoW, sGoW, sPw1, sPw2 = 60, 61, 62, 63
sYb, sDir, sF = 40, 41, 42
ST0 = 64

vTa2, vD, vTm2 = 0, 1, 2
vO2 = 2
vCR, vP, vO = 3, 4, 5
vB = [6, 7, 8]
vWr = [9, 10]
vP2 = 11
ACC = 12
BBUF = [48, 52, 56, 60, 64, 68, 244, 248, 252]
LACC = 72
CF = 84
PV = 120
vTa, vTm = 138, 139
WL = 140
WV = 176
LEAD = int(os.environ.get("LEAD", "8"))

STAMPS = int(os.environ.get("STAMPS", "0"))
EXP = os.environ.get("EXP", "")


def wreg(f):
    if f < 64:
        return "a[%d:%d]" % (4 * f, 4 * f + 3)
    r = WV + 4 * (f - 64)
    return "v[%d:%d]" % (r, r + 3)


def wreg_half(f, half):
    if f < 64:
        r = 4 * f + 2 * half
        return "a[%d:%d]" % (r, r + 1)
    r = WV + 4 * (f - 64) + 2 * half
    return "v[%d:%d]" % (r, r + 1)


def v4(r):
    return "v[%d:%d]" % (r, r + 3)


def v2(r):
    return "v[%d:%d]" % (r, r + 1)


class Wait:
    def __init__(self, vm, lg):
        self.vm, self.lg = vm, lg

    def merge(self, o):
        f = lambda a, b: b if a is None else (a if b is None else min(a, b))
        self.vm, self.lg = f(self.vm, o.vm), f(self.lg, o.lg)

    def text(self):
        parts = []
        if self.vm is not None:
            parts.append("vmcnt(%d)" % self.vm)
        if self.lg is not None:
            parts.append("lgkmcnt(%d)" % self.lg)
        return ("    s_waitcnt " + " ".join(parts)) if parts else None


class Gen:
    def __init__(self):
        self.out = []
        self.lg = []
        self.vm = []

    def e(self, s):
        self.out.append("    " + s)

    def label(self, s):
        self.out.append(s + ":")

    def ds(self, s, tag=None):
        self.e(s)
        self.lg.append(tag)

    def vmem(self, s, tag=None):
        self.e(s)
        self.vm.append(tag)

    def _need(self, q, tag, mx, oldest=False):
        if tag is None or tag not in q:
            return None
        if oldest:
            pos = [i for i, x in enumerate(q) if x == tag]
            idx = pos[min(6, len(pos) - 1)]
        else:
            idx = len(q) - 1 - q[::-1].index(tag)
        n = len(q) - 1 - idx
        n = min(n, mx)
        del q[: len(q) - n]
        return n

    def wait(self, lg=None, vm=None, oldest=False):
        self.out.append(Wait(self._need(self.vm, vm, 63, oldest), self._need(self.lg, lg, 15)))

    def drain(self, lg=False, vm=False):
        self.out.append(Wait(0 if vm else None, 0 if lg else None))
        if vm:
            self.vm = []
        if lg:
            self.lg = []

    def text(self):
        r = []
        for x in self.out:
            if isinstance(x, Wait):
                t = x.text()
                if t:
                    r.append(t)
            else:
                r.append(x)
        return "\n".join(r) + "\n"


g = Gen()
e = g.e
nst = [0]


def stamp(i=None):
    if not STAMPS:
        return
    if i is None:
        i = nst[0]
    nst[0] = max(nst[0], i + 1)
    e("s_memtime s[100:101]")
    e("s_waitcnt lgkmcnt(0)")
    e("s_mov_b32 s%d, s100" % (ST0 + i))


def srd(d, ptr, nbytes):
    e("s_mov_b32 s%d, s%d" % (d, ptr))
    e("s_and_b32 s%d, s%d, 0xffff" % (d + 1, ptr + 1))
    e("s_mov_b32 s%d, 0x%x" % (d + 2, nbytes))
    e("s_mov_b32 s%d, 0x00020000" % (d + 3))


def lat_init(acc, pv):
    r = []
    for mt in range(3):
        a = acc + 4 * mt
        p = pv + 2 * mt
        r.append("v_lshlrev_b32 v%d, 16, v%d" % (a, p))
        r.append("v_and_b32 v%d, 0xffff0000, v%d" % (a + 1, p))
        r.append("v_lshlrev_b32 v%d, 16, v%d" % (a + 2, p + 1))
        r.append("v_and_b32 v%d, 0xffff0000, v%d" % (a + 3, p + 1))
    return r


def lat_mfma(acc, cf, ks, mt):
    a = acc + 4 * mt
    return "v_mfma_f32_16x16x32_bf16 %s, %s, %s, %s" % (
        v4(a), v4(WL + (ks * 3 + mt) * 4), v4(cf + 4 * ks), v4(a))


def run(items):
    for kind, s, tag in items:
        if kind == "vm":
            g.vmem(s, tag)
        elif kind == "vmx":
            e("s_mov_b64 exec, 0xffffffff")
            g.vmem(s, tag)
            e("s_mov_b64 exec, -1")
        elif kind == "vm8":
            e("s_mov_b64 exec, 0xff")
            g.vmem(s, tag)
            e("s_mov_b64 exec, -1")
        elif kind == "ds":
            g.ds(s, tag)
        elif kind == "wvm":
            g.wait(vm=tag)
        elif kind == "wlg":
            g.wait(lg=tag)
        else:
            e(s)


def w_dma(srd_reg, row, tau, tag):
    r = []
    r.append(("i", "s_add_u32 m0, s%d, %d" % (sLoW, row * ROWB), None))
    if tau is None:
        r.append(("i", "s_mov_b32 s%d, s%d" % (sT[7], sGoW), None))
    else:
        r.append(("i", "s_add_u32 s%d, s%d, %d" % (sT[7], sGoW, tau * 18432), None))
        if tau // 3 == 0:
            r.append(("i", "s_add_u32 s%d, s%d, s%d" % (sT[7], sT[7], sFlW), None))
        elif tau // 3 == 2:
            r.append(("i", "s_sub_u32 s%d, s%d, s%d" % (sT[7], sT[7], sFlW), None))
    for k in range(4):
        r.append(("vm", "buffer_load_dwordx4 v%d, s[%d:%d], s%d offen offset:%d lds" % (
            vD, srd_reg, srd_reg + 3, sT[7], 1024 * k), tag))
    r.append(("i", "s_add_u32 m0, m0, 4096", None))
    r.append(("i", "s_add_u32 s%d, s%d, 4096" % (sT[7], sT[7]), None))
    r.append(("vmx", "buffer_load_dwordx4 v%d, s[%d:%d], s%d offen lds" % (vD, srd_reg, srd_reg + 3, sT[7]), tag))
    return r


def raw_dma(tag):
    r = []
    r.append(("i", "s_add_u32 m0, s%d, s%d" % (sLoW, sRow), None))
    r.append(("i", "s_nop 0", None))
    for k in range(4):
        r.append(("vm", "buffer_load_dwordx4 v%d, s[%d:%d], s%d offen offset:%d nt lds" % (
            vD, S_CF, S_CF + 3, sCFd, 1024 * k), tag))
    r.append(("i", "s_add_u32 m0, m0, 4096", None))
    r.append(("i", "s_add_u32 s%d, s%d, 4096" % (sT[7], sCFd), None))
    r.append(("vmx", "buffer_load_dwordx4 v%d, s[%d:%d], s%d offen nt lds" % (vD, S_CF, S_CF + 3, sT[7]), tag))
    return r


def raw_adv():
    return [("i", "s_add_u32 s%d, s%d, s%d" % (sCFd, sCFd, sDirR), None),
            ("i", "s_add_u32 s%d, s%d, %d" % (sRow, sRow, 2 * ROWB), None)]


def p_dma(tag):
    r = []
    r.append(("i", "s_add_u32 m0, s%d, s%d" % (sPl, sPw1), None))
    r.append(("i", "s_add_u32 s%d, s%d, s%d" % (sT[7], sPg, sPw1), None))
    r.append(("vm", "buffer_load_dwordx4 v%d, s[%d:%d], s%d offen nt lds" % (vD, S_P, S_P + 3, sT[7]), tag))
    r.append(("i", "s_add_u32 m0, s%d, s%d" % (sPl, sPw2), None))
    r.append(("i", "s_add_u32 s%d, s%d, s%d" % (sT[7], sPg, sPw2), None))
    r.append(("vm8", "buffer_load_dwordx4 v%d, s[%d:%d], s%d offen nt lds" % (vD, S_P, S_P + 3, sT[7]), tag))
    return r


def p_adv():
    return [("i", "s_add_u32 s%d, s%d, s%d" % (sPg, sPg, sDirP), None),
            ("i", "s_add_u32 s%d, s%d, 4608" % (sPl, sPl), None),
            ("i", "s_cmp_eq_u32 s%d, %d" % (sPl, PS0 + 6 * 4608), None),
            ("i", "s_cselect_b32 s%d, %d, s%d" % (sPl, PS0, sPl), None)]


def tr_items(regfn, tag):
    r = []
    for ks in range(3):
        for mt in range(3):
            for half in range(2):
                co = 8 * mt if mt < 2 else 0
                if ks == 0:
                    a, o = (vTa if mt < 2 else vTa2), 768 * half + co
                elif ks == 1:
                    a, o = (vTm if mt < 2 else vTm2), 6144 + 768 * half + co
                else:
                    a, o = (vTa if mt < 2 else vTa2), ROWB + 3072 + 768 * half + co
                r.append(("ds", "ds_read_b64_tr_b16 %s, v%d offset:%d" % (regfn(ks, mt, half), a, o), tag))
    return r


trrow = [WLROW]


def tr_goto(row):
    d = (row - trrow[0]) * ROWB
    trrow[0] = row
    if d == 0:
        return []
    return [("i", "v_add_u32 v%d, 0x%x, v%d" % (x, d & 0xffffffff, x), None) for x in (vTa, vTm, vTa2, vTm2)]


def read_wl():
    run(tr_goto(WLROW))
    run(tr_items(lambda ks, mt, half: v2(WL + (ks * 3 + mt) * 4 + 2 * half), "wf"))


def read_tap(tau):
    run(tr_goto(TAPROW[tau]))
    run(tr_items(lambda ks, mt, half: wreg_half((tau * 3 + ks) * 3 + mt, half), "wf"))


def pack_items(a):
    return [("i", "v_cvt_pk_bf16_f32 v%d, v%d, v%d" % (a, a, a + 1), None),
            ("i", "v_cvt_pk_bf16_f32 v%d, v%d, v%d" % (a + 1, a + 2, a + 3), None),
            ("i", "v_cvt_pk_bf16_f32 v%d, v%d, v%d" % (a + 2, a + 4, a + 5), None),
            ("i", "v_cvt_pk_bf16_f32 v%d, v%d, v%d" % (a + 3, a + 6, a + 7), None),
            ("i", "v_cvt_pk_bf16_f32 v%d, v%d, v%d" % (a + 8, a + 8, a + 9), None),
            ("i", "v_cvt_pk_bf16_f32 v%d, v%d, v%d" % (a + 9, a + 10, a + 11), None)]


def raw_reads(cf, off, tag):
    r = []
    for t in range(3):
        for ks in range(3):
            r.append(("ds", "ds_read_b128 %s, v%d offset:%d" % (
                v4(cf + (t * 3 + ks) * 4), vCR, off + t * 3072 + 64 * ks), tag))
    return r


def p_reads(off, tag):
    r = []
    for t in range(3):
        r.append(("ds", "ds_read_b128 %s, v%d offset:%d" % (v4(PV + t * 6), vP, off + 1536 * t), tag))
        r.append(("ds", "ds_read_b64 %s, v%d offset:%d" % (v2(PV + t * 6 + 4), vP2, off + 1536 * t), tag))
    return r


def main():
    hdr = open("cdna_kernels/%s.s.ref" % NAME).read().split("\n")
    for ln in hdr:
        if ln.startswith("; @launch"):
            break
        g.out.append(ln)
    g.out.append("; @launch grid=(256,1,1) block=(256,1,1) lds=%d" % LDS_TOTAL)
    g.out.append('.amdgcn_target "amdgcn-amd-amdhsa--gfx950"')
    g.out.append(".text")
    g.out.append(".globl %s_kernel" % NAME)
    g.out.append(".p2align 8")
    g.out.append(".type %s_kernel,@function" % NAME)
    g.label("%s_kernel" % NAME)

    e("s_cmp_ge_u32 s2, 256")
    e("s_cbranch_scc1 L_end")
    e("s_load_dwordx8 s[40:47], s[0:1], 0")
    e("s_load_dwordx2 s[48:49], s[0:1], 32")
    stamp()
    if "dbg" in EXP:
        e("s_memrealtime s[100:101]")
        e("s_waitcnt lgkmcnt(0)")
        e("s_mov_b32 s%d, s100" % (ST0 + 10))
    vL, vN, vQ, vT0, vT1, vT2, vT3, vT4 = 244, 245, 246, 247, 248, 249, 250, 251
    CF2 = 12
    HCF, HPV = 48, 60
    vHc, vHp, vHp2, vHw, vHw2 = 66, 67, 68, 69, 70
    LACC2 = 244
    e("v_and_b32 v%d, 63, v0" % vL)
    e("v_lshrrev_b32 v%d, 6, v0" % vT0)
    e("v_and_b32 v%d, 15, v%d" % (vN, vL))
    e("v_lshrrev_b32 v%d, 4, v%d" % (vQ, vL))
    e("v_readfirstlane_b32 s%d, v%d" % (sW, vT0))
    e("v_lshlrev_b32 v%d, 4, v%d" % (vD, vL))
    e("s_nop 2")
    e("s_and_b32 s%d, s%d, 1" % (sH, sW))
    e("s_lshr_b32 s%d, s%d, 1" % (sS, sW))
    e("s_lshr_b32 s%d, s2, 3" % sBY)
    e("s_and_b32 s%d, s2, 7" % sBX)
    e("s_mul_i32 s%d, s%d, 12" % (sY0, sBY))
    e("s_mul_i32 s%d, s%d, 9216" % (sT[0], sBX))
    e("s_mul_i32 s%d, s%d, 96" % (sT[1], sH))
    e("s_mul_i32 s%d, s%d, %d" % (sT[2], sS, ROWB))
    e("s_mul_i32 s%d, s%d, 4608" % (sT[3], sBX))
    e("s_mul_i32 s%d, s%d, 4608" % (sGoW, sW))
    e("s_mul_i32 s%d, s%d, 4608" % (sLoW, sH))
    e("s_add_u32 s%d, s%d, s%d" % (sLoW, sLoW, sT[2]))
    e("s_add_u32 s%d, s%d, 192" % (sLoW, sLoW))
    e("s_lshl_b32 s%d, s%d, 10" % (sPw1, sW))
    e("s_lshl_b32 s%d, s%d, 7" % (sPw2, sW))
    e("s_add_u32 s%d, s%d, 4096" % (sPw2, sPw2))
    e("s_waitcnt lgkmcnt(0)")
    srd(S_CF, 40, 28311552)
    srd(S_P, 42, 7077888)
    srd(S_WL, 44, 18432)
    srd(S_W, 46, 165888)
    srd(S_O, 48, 28311552)
    flip_src = "s_and_b32 s%d, s%d, 1" % (sF, sBY)
    if "noflip" in EXP:
        flip_src = "s_mov_b32 s%d, 0" % sF
    e(flip_src)
    e("s_mul_i32 s%d, s%d, 110592" % (sFlW, sF))
    e("s_lshl_b32 s%d, s%d, 1" % (sDir, sF))
    e("s_sub_u32 s%d, 1, s%d" % (sDir, sDir))
    e("s_mul_i32 s%d, s%d, 13" % (sYb, sF))
    e("s_add_u32 s%d, s%d, s%d" % (sYb, sYb, sY0))
    e("s_sub_u32 s%d, s%d, 1" % (sYb, sYb))
    e("s_mul_i32 s%d, s%d, %d" % (sDirR, sDir, 2 * 73728))
    e("s_mul_i32 s%d, s%d, 36864" % (sDirP, sDir))
    e("s_mul_i32 s%d, s%d, s%d" % (sT[4], sDir, sS))
    e("s_add_u32 s%d, s%d, s%d" % (sT[4], sT[4], sYb))
    e("s_mul_i32 s%d, s%d, 73728" % (sCFd, sT[4]))
    e("s_mul_i32 s%d, s%d, 4608" % (sT[5], sH))
    e("s_add_u32 s%d, s%d, s%d" % (sCFd, sCFd, sT[5]))
    e("s_add_u32 s%d, s%d, s%d" % (sCFd, sCFd, sT[0]))
    e("s_mov_b32 s%d, 0" % sRow)
    e("s_mul_i32 s%d, s%d, 6" % (sT[5], sBY))
    e("s_mul_i32 s%d, s%d, 7" % (sT[6], sF))
    e("s_add_u32 s%d, s%d, s%d" % (sT[5], sT[5], sT[6]))
    e("s_sub_u32 s%d, s%d, 1" % (sT[5], sT[5]))
    e("s_mul_i32 s%d, s%d, 36864" % (sPg, sT[5]))
    e("s_add_u32 s%d, s%d, s%d" % (sPg, sPg, sT[3]))
    e("s_mov_b32 s%d, %d" % (sPl, PS0))
    e("s_add_u32 s%d, s%d, s%d" % (sT[6], sT[4], sDir))
    e("s_mul_i32 s%d, s%d, 73728" % (sO[0], sT[6]))
    e("s_add_u32 s%d, s%d, 3072" % (sO[1], sO[0]))
    e("s_add_u32 s%d, s%d, 6144" % (sO[2], sO[0]))
    e("s_sub_u32 s%d, s%d, s%d" % (sO[2], sO[2], sDirR))

    run(w_dma(S_WL, WLROW, None, "a"))
    e("s_mov_b32 s%d, s%d" % (sT[6], sCFd))
    e("s_cmp_lt_i32 s%d, 0" % sCFd)
    e("s_cselect_b32 s%d, 0x%x, s%d" % (sCFd, OOB, sCFd))
    run(raw_dma("a"))
    e("s_mov_b32 s%d, s%d" % (sCFd, sT[6]))
    run(raw_adv())
    e("s_mov_b32 s%d, s%d" % (sT[6], sPg))
    e("s_cmp_lt_i32 s%d, 0" % sPg)
    e("s_cselect_b32 s%d, 0x%x, s%d" % (sPg, OOB, sPg))
    run(p_dma("a"))
    e("s_mov_b32 s%d, s%d" % (sPg, sT[6]))
    run(p_adv())
    run(p_dma("a"))
    run(p_adv())
    run(raw_dma("b"))
    run(raw_adv())
    run(p_dma("b"))
    run(p_adv())

    e("v_mul_u32_u24 v%d, 192, v%d" % (vT0, vN))
    e("v_lshl_add_u32 v%d, v%d, 4, v%d" % (vT1, vQ, vT0))
    e("v_add_u32 v%d, s%d, v%d" % (vO, sT[0], vT1))
    e("v_add_u32 v%d, s%d, v%d" % (vO, sT[1], vO))
    e("v_add_u32 v%d, s%d, v%d" % (vCR, sT[2], vT1))
    e("v_add_u32 v%d, 192, v%d" % (vCR, vCR))
    e("v_lshrrev_b32 v%d, 1, v%d" % (vT1, vN))
    e("v_mul_u32_u24 v%d, 192, v%d" % (vT1, vT1))
    e("s_mul_i32 s%d, s%d, 4608" % (sT[5], sS))
    e("s_add_u32 s%d, s%d, %d" % (sT[5], sT[5], PS0))
    e("s_add_u32 s%d, s%d, s%d" % (sT[5], sT[5], sT[1]))
    e("v_add_u32 v%d, s%d, v%d" % (vT1, sT[5], vT1))
    e("v_lshl_add_u32 v%d, v%d, 4, v%d" % (vP, vQ, vT1))
    e("v_lshl_add_u32 v%d, v%d, 3, v%d" % (vP2, vQ, vT1))
    e("v_add_u32 v%d, 64, v%d" % (vP2, vP2))
    e("s_mul_i32 s%d, s%d, 48" % (sT[4], sBX))
    e("s_mul_i32 s%d, s%d, 49" % (sT[5], sS))
    e("s_add_u32 s%d, s%d, s%d" % (sT[4], sT[4], sT[5]))
    e("s_sub_u32 s%d, s%d, 1" % (sT[4], sT[4]))
    e("v_mul_lo_u32 v%d, v%d, s%d" % (vT1, vN, sDir))
    e("v_add_u32 v%d, s%d, v%d" % (vT1, sYb, vT1))
    e("v_cmp_gt_u32 vcc, 0x180, v%d" % vT1)
    e("v_cmp_gt_u32 s[44:45], 14, v%d" % vN)
    e("s_and_b64 vcc, vcc, s[44:45]")
    e("s_cmp_lt_u32 s%d, 384" % sT[4])
    e("s_cselect_b64 s[46:47], -1, 0")
    e("s_and_b64 vcc, vcc, s[46:47]")
    e("v_mul_u32_u24 v%d, 384, v%d" % (vT2, vT1))
    e("v_add_u32 v%d, s%d, v%d" % (vT2, sT[4], vT2))
    e("v_mul_u32_u24 v%d, 192, v%d" % (vT2, vT2))
    e("v_lshl_add_u32 v%d, v%d, 4, v%d" % (vT2, vQ, vT2))
    e("v_mov_b32 v%d, 0x%x" % (vT3, OOB))
    e("v_cndmask_b32 v%d, v%d, v%d, vcc" % (vHc, vT3, vT2))
    e("v_lshrrev_b32 v%d, 1, v%d" % (vT2, vT1))
    e("v_mul_u32_u24 v%d, 192, v%d" % (vT2, vT2))
    e("s_lshr_b32 s%d, s%d, 1" % (sT[5], sT[4]))
    e("v_add_u32 v%d, s%d, v%d" % (vT2, sT[5], vT2))
    e("v_mul_u32_u24 v%d, 192, v%d" % (vT2, vT2))
    e("v_add_u32 v%d, s%d, v%d" % (vT2, sT[1], vT2))
    e("v_lshl_add_u32 v%d, v%d, 4, v%d" % (vT4, vQ, vT2))
    e("v_cndmask_b32 v%d, v%d, v%d, vcc" % (vHp, vT3, vT4))
    e("v_lshl_add_u32 v%d, v%d, 3, v%d" % (vT4, vQ, vT2))
    e("v_add_u32 v%d, 64, v%d" % (vT4, vT4))
    e("v_cndmask_b32 v%d, v%d, v%d, vcc" % (vHp2, vT3, vT4))
    e("v_mul_u32_u24 v%d, %d, v%d" % (vT2, ROWB, vN))
    e("s_mul_i32 s%d, s%d, %d" % (sT[5], sS, 49 * 192))
    e("v_add_u32 v%d, s%d, v%d" % (vT2, sT[5], vT2))
    e("v_mov_b32 v%d, 0x%x" % (vT3, DUMMY))
    e("v_cndmask_b32 v%d, v%d, v%d, s[44:45]" % (vT2, vT3, vT2))
    e("v_add_u32 v%d, s%d, v%d" % (vT2, sT[1], vT2))
    e("v_lshl_add_u32 v%d, v%d, 4, v%d" % (vHw, vQ, vT2))
    e("v_lshl_add_u32 v%d, v%d, 3, v%d" % (vHw2, vQ, vT2))
    e("v_add_u32 v%d, 64, v%d" % (vHw2, vHw2))
    for d in range(3):
        e("v_add_u32 v%d, %d, v%d" % (vT1, d, vN))
        e("v_bfe_u32 v%d, v%d, 2, 1" % (vT2, vT1))
        e("v_lshlrev_b32 v%d, 5, v%d" % (vT2, vT2))
        e("v_lshlrev_b32 v%d, 4, v%d" % (vT3, vQ))
        e("v_xor_b32 v%d, v%d, v%d" % (vT2, vT2, vT3))
        e("v_mul_u32_u24 v%d, 192, v%d" % (vT1, vT1))
        e("v_add3_u32 v%d, v%d, v%d, s%d" % (vB[d], vT1, vT2, sT[2]))
    e("v_add_u32 v%d, 1, v%d" % (vT1, vN))
    e("v_bfe_u32 v%d, v%d, 2, 1" % (vT2, vT1))
    e("v_lshlrev_b32 v%d, 5, v%d" % (vT2, vT2))
    e("v_mul_u32_u24 v%d, 192, v%d" % (vT1, vT1))
    e("v_lshlrev_b32 v%d, 4, v%d" % (vT3, vQ))
    e("v_add_u32 v%d, s%d, v%d" % (vT3, sT[1], vT3))
    e("v_xor_b32 v%d, v%d, v%d" % (vT3, vT3, vT2))
    e("v_add3_u32 v%d, v%d, v%d, s%d" % (vWr[0], vT1, vT3, sT[2]))
    e("v_lshlrev_b32 v%d, 3, v%d" % (vT3, vQ))
    e("v_add_u32 v%d, s%d, v%d" % (vT3, sT[1], vT3))
    e("v_add_u32 v%d, 64, v%d" % (vT3, vT3))
    e("v_xor_b32 v%d, v%d, v%d" % (vT3, vT3, vT2))
    e("v_add3_u32 v%d, v%d, v%d, s%d" % (vWr[1], vT1, vT3, sT[2]))
    e("v_lshrrev_b32 v%d, 2, v%d" % (vT1, vN))
    e("v_lshl_add_u32 v%d, v%d, 3, v%d" % (vT1, vQ, vT1))
    e("v_mul_u32_u24 v%d, 192, v%d" % (vT1, vT1))
    e("v_add_u32 v%d, s%d, v%d" % (vT1, sT[1], vT1))
    e("v_add_u32 v%d, 0x%x, v%d" % (vT1, WLROW * ROWB + 192, vT1))
    e("v_and_b32 v%d, 3, v%d" % (vT2, vN))
    e("v_lshl_add_u32 v%d, v%d, 4, v%d" % (vTa, vT2, vT1))
    e("v_lshl_add_u32 v%d, v%d, 3, v%d" % (vTa2, vT2, vT1))
    e("v_add_u32 v%d, 64, v%d" % (vTa2, vTa2))
    e("v_lshrrev_b32 v%d, 1, v%d" % (vT2, vQ))
    e("v_mul_u32_u24 v%d, 384, v%d" % (vT2, vT2))
    e("v_add_u32 v%d, v%d, v%d" % (vTm, vTa, vT2))
    e("v_add_u32 v%d, v%d, v%d" % (vTm2, vTa2, vT2))
    stamp()

    def issue_halo():
        for ks in range(3):
            g.vmem("buffer_load_dwordx4 %s, v%d, s[%d:%d], 0 offen offset:%d" % (
                v4(HCF + 4 * ks), vHc, S_CF, S_CF + 3, 64 * ks), "h")
        g.vmem("buffer_load_dwordx4 %s, v%d, s[%d:%d], 0 offen" % (v4(HPV), vHp, S_P, S_P + 3), "h")
        g.vmem("buffer_load_dwordx2 %s, v%d, s[%d:%d], 0 offen" % (v2(HPV + 4), vHp2, S_P, S_P + 3), "h")

    def issue_unit(tag):
        run(raw_dma(tag))
        run(raw_adv())
        run(p_dma(tag))
        run(p_adv())

    def bar():
        e("s_barrier")

    def front():
        trrow[0] = WLROW
        issue_halo()
        NT0 = int(os.environ.get("NT0", "0"))
        for tau in range(NT0):
            run(w_dma(S_W, TAPROW[tau], tau, "t%d" % tau))
        stamp(2)
        g.wait(vm="a")
        bar()
        stamp(3)
        pr = p_reads(0, "x")
        rr = raw_reads(CF, 0, "x")
        run([(k, a, "p0") for (k, a, _) in pr])
        run([(k, a, "c0") for (k, a, _) in rr[:3]])
        read_wl()
        run([(k, a, "c1") for (k, a, _) in rr[3:]])

        tiles = []
        for t in range(3):
            tiles.append((CF + t * 12, PV + t * 6, vWr, t * 3072))
        tiles.append((HCF, HPV, [vHw, vHw2], 0))
        for t in range(3):
            tiles.append((CF2 + t * 12, PV + t * 6, vWr, 2 * ROWB + t * 3072))
        accs = [LACC, LACC2]

        def fin_items(i):
            cf, pv, wa, wo = tiles[i]
            a = accs[i % 2]
            r = pack_items(a)
            r.append(("ds", "ds_write_b128 v%d, %s offset:%d" % (wa[0], v4(a), wo), "w"))
            r.append(("ds", "ds_write_b64 v%d, %s offset:%d" % (wa[1], v2(a + 8), wo), "w"))
            return r

        g.wait(lg="p0")
        for s_ in lat_init(accs[0], tiles[0][1]):
            e(s_)
        g.wait(lg="wf")
        for i in range(len(tiles)):
            cf, pv, wa, wo = tiles[i]
            acc = accs[i % 2]
            gaps = defaultdict(list)
            if i == 1:
                gaps[2] += [("wlg", None, "c1"), ("wvm", None, "b"), ("i", "s_barrier", None)]
                gaps[2] += raw_reads(CF2, 2 * ROWB, "c2")[:5]
                gaps[3] += raw_reads(CF2, 2 * ROWB, "c2")[5:]
            if i == 5:
                gaps[2] += [("i", "s_barrier", None)]
            if i > 0:
                f = fin_items(i - 1)
                gaps[4] += f[:4]
                gaps[5] += f[4:]
            if i == 2:
                gaps[6] += p_reads(4608, "p1")
            if NT0 + i < 4:
                gaps[9] += w_dma(S_W, TAPROW[NT0 + i], NT0 + i, "t%d" % (NT0 + i))
            if i + 1 < len(tiles):
                ini = [("i", s_, None) for s_ in lat_init(accs[(i + 1) % 2], tiles[i + 1][1])]
                if i + 1 == 3:
                    ini = [("wvm", None, "h")] + ini
                if i + 1 == 4:
                    ini = [("wlg", None, "p1")] + ini
                gaps[6] += ini[:5]
                gaps[7] += ini[5:9]
                gaps[8] += ini[9:]
            if i == 1:
                g.wait(lg="c1")
            if i == 4:
                g.wait(lg="c2")
            k = 0
            for ks in range(3):
                for mt in range(3):
                    e(lat_mfma(acc, cf, ks, mt))
                    k += 1
                    run(gaps[k])
            e("s_nop 0")
        e("s_nop 7")
        run(fin_items(len(tiles) - 1))
        stamp(4)
        issue_unit("u2")
        g.wait(vm="t0", lg="w")
        bar()
        read_tap(0)
        stamp(5)

    front()

    for x in vWr + [vCR]:
        e("v_add_u32 v%d, %d, v%d" % (x, 4 * ROWB, x))
    e("v_add_u32 v%d, %d, v%d" % (vP, 2 * 4608, vP))
    e("v_add_u32 v%d, %d, v%d" % (vP2, 2 * 4608, vP2))
    e("s_add_u32 s%d, s%d, 2" % (sPi, sS))
    e("s_add_u32 s%d, s%d, s%d" % (sO[2], sO[2], sDirR))

    def slot_tk(sig, kouter):
        return (sig % 3, sig // 3) if kouter else (sig // 27, sig % 27)

    def bread(sig, bias, kouter=False):
        t, kap = slot_tk(sig, kouter)
        tau, ks = kap // 3, kap % 3
        di, dj = tau // 3, tau % 3
        off = di * ROWB + t * 3072 + 64 * ks + bias
        return "ds_read_b128 %s, v%d offset:%d" % (v4(BBUF[sig % 9]), vB[dj], off)

    for sig in range(LEAD):
        g.ds(bread(sig, 0, True), "B%d" % sig)

    def drain_items(t, part, so=None):
        a = ACC + t * 12
        p = pack_items(a)
        so = sO[t] if so is None else so
        if "nost" in EXP:
            return p[:4] if part == 0 else p[4:]
        if part == 0:
            return p[:4] + [("vm", "buffer_store_dwordx4 %s, v%d, s[%d:%d], s%d offen" % (
                v4(a), vO, S_O, S_O + 3, so), "st")]
        return p[4:] + [("vm", "buffer_store_dwordx2 %s, v%d, s[%d:%d], s%d offen" % (
            v2(a + 8), vO2, S_O, S_O + 3, so), "st")]

    def adv_o(t):
        return [("i", "s_add_u32 s%d, s%d, s%d" % (sO[t], sO[t], sDirR), None)]

    def step(first, lateral, last):
        kouter = first
        pre = defaultdict(list)
        mid = defaultdict(list)
        LB = [12, 34, 56]
        comp = False
        post = []
        if not first:
            for t in range(3):
                tp = (t + 2) % 3
                d0 = drain_items(tp, 0)
                d1 = drain_items(tp, 1)
                mid[27 * t + 3] += d0[:2]
                mid[27 * t + 4] += d0[2:4]
                mid[27 * t + 5] += d0[4:]
                mid[27 * t + 7] += d1[:2]
                mid[27 * t + 8] += d1[2:]
                mid[27 * t + 9] += adv_o(tp)
            if lateral:
                rr = raw_reads(CF, 0, "rr")
                pr = p_reads(0, "rr")
                seq = []
                for t in range(3):
                    seq += [(k, a, "rr%d" % t) for (k, a, _) in pr[2 * t:2 * t + 2] + rr[3 * t:3 * t + 3]]
                for i, it in enumerate(seq):
                    mid[2 + i].append(it)
                for t in range(3):
                    pre[LB[t]].append(("wlg", None, "rr%d" % t))
                pre[26].append(("wlg", None, "rr2"))
                pre[26].append(("i", "s_barrier", None))
                mid[27].append(("i", "s_cmp_ge_u32 s%d, 2" % sLoop, None))
                mid[27].append(("i", "s_cselect_b32 s%d, 0x%x, s%d" % (sCFd, OOB, sCFd), None))
                mid[27].append(("i", "s_cselect_b32 s%d, 0x%x, s%d" % (sRow, LDS_DROP, sRow), None))
                mid[27].append(("i", "s_cselect_b32 s%d, 0x%x, s%d" % (sPg, OOB, sPg), None))
                mid[27].append(("i", "s_cselect_b32 s%d, 0x%x, s%d" % (sPl, LDS_DROP, sPl), None))
                dm = raw_dma("u") + raw_adv() + p_dma("u") + p_adv()
                pos = 38
                for it in dm:
                    mid[pos].append(it)
                    if it[0] in ("vm", "vmx", "vm8"):
                        pos += 2
        else:
            comp = True
            LB = [38, 50, 62]
            rr = raw_reads(CF, 0, "rr") + p_reads(0, "rr")
            for i, it in enumerate(rr):
                mid[28 + i // 2].append(it)
            dm = raw_dma("u")
            mid[48] += dm[:4]
            mid[49] += dm[4:]
            mid[50] += raw_adv()
            dm = p_dma("u")
            mid[51] += dm[:3]
            mid[52] += dm[3:]
            mid[53] += p_adv()
            dm = raw_dma("u")
            mid[66] += dm[:4]
            mid[67] += dm[4:]
            mid[68] += raw_adv()
            dm = p_dma("u")
            mid[69] += dm[:3]
            mid[70] += dm[3:]
            mid[71] += p_adv()
            for tau in range(1, 9):
                p = 9 * (tau - 1) + 1
                if "s0nowait" not in EXP:
                    pre[p].append(("wvm", None, "t%d" % tau))
                if tau == 4:
                    pre[p].append(("wvm", None, "u2"))
                if tau == 5:
                    pre[p].append(("wlg", None, "rr"))
                if "s0nobar" not in EXP:
                    pre[p].append(("i", "s_barrier", None))
                pre[p] += tr_goto(TAPROW[tau])
                tr = tr_items(lambda ks, mt, half, tau=tau: wreg_half((tau * 3 + ks) * 3 + mt, half), "wf%d" % tau)
                if "s0notr" in EXP:
                    tr = tr[:1]
                for i, it in enumerate(tr):
                    mid[p + i // 3].append(it)
                if tau in TAP_ISSUE:
                    nt = TAP_ISSUE[tau]
                    dm = w_dma(S_W, TAPROW[nt], nt, "t%d" % nt)
                    mid[p] = dm[:5] + mid[p]
                    mid[p + 1] = dm[5:] + mid[p + 1]
            pre[0].append(("wlg", None, "wf"))
            for tau in range(1, 9):
                pre[9 * tau].append(("wlg", None, "wf%d" % tau))
        if lateral:
            for t in range(3):
                b = LB[t]
                init = lat_init(LACC, PV + t * 6)
                ni, nm = (6, 2) if comp else (4, 1)
                for i, s_ in enumerate(init):
                    mid[b + i // ni].append(("i", s_, None))
                b1 = b + 12 // ni
                k = 0
                for ks in range(3):
                    for mt in range(3):
                        mid[b1 + k // nm].append(("lm", lat_mfma(LACC, CF + t * 12, ks, mt), None))
                        k += 1
                b2 = b1 + (8 // nm) + 3
                pk = pack_items(LACC)
                mid[b2] += pk[:4]
                mid[b2 + 1].append(("ds", "ds_write_b128 v%d, %s offset:%d" % (vWr[0], v4(LACC), t * 3072), "w"))
                mid[b2 + 1] += pk[4:]
                mid[b2 + 2].append(("ds", "ds_write_b64 v%d, %s offset:%d" % (vWr[1], v2(LACC + 8), t * 3072), "w"))
            post = [("i", "v_add_u32 v%d, %d, v%d" % (x, 2 * ROWB, x), None) for x in vWr + [vCR]]
            mid[76] += [("i", "s_mov_b32 s%d, 4608" % sT[5], None),
                        ("i", "s_add_u32 s%d, s%d, 1" % (sPi, sPi), None),
                        ("i", "s_cmp_eq_u32 s%d, 6" % sPi, None),
                        ("i", "s_cselect_b32 s%d, 0x%x, s%d" % (sT[5], (-5 * 4608) & 0xffffffff, sT[5]), None)]
            mid[78] += [("i", "v_add_u32 v%d, s%d, v%d" % (vP, sT[5], vP), None),
                        ("i", "v_add_u32 v%d, s%d, v%d" % (vP2, sT[5], vP2), None)]
        for sig in range(81):
            t, kap = slot_tk(sig, kouter)
            if "s0" in EXP and first and sig % 9 == 0:
                stamp(10 + sig // 9)
            if "inloop" in EXP and (not first) and lateral and sig in (0, 2, 8, 9, 15, 27, 34, 54, 56, 73, 80):
                k_ = 10 + (0, 2, 8, 9, 15, 27, 34, 54, 56, 73, 80).index(sig)
                nst[0] = max(nst[0], k_ + 1)
                e("s_memtime s[100:101]")
                e("s_waitcnt lgkmcnt(0)")
                e("s_cmp_eq_u32 s%d, 1" % sLoop)
                e("s_cselect_b32 s%d, s100, s%d" % (ST0 + k_, ST0 + k_))
            run(pre[sig])
            g.wait(lg="B%d" % (sig % 9))
            items = [x for x in mid[sig] if x[0] != "lm"]
            lms = [x for x in mid[sig] if x[0] == "lm"]
            n = len(items)
            n1 = (n + 2) // 3
            n0 = (n - n1) // 2
            cuts = [0, n0, n0 + n1, n]
            nxt = sig + LEAD
            for mt in range(3):
                a = ACC + (t * 3 + mt) * 4
                c = "0" if kap == 0 else v4(a)
                e("v_mfma_f32_16x16x32_bf16 %s, %s, %s, %s" % (v4(a), wreg(kap * 3 + mt), v4(BBUF[sig % 9]), c))
                if mt == 0:
                    if nxt == 9 and not first:
                        g.wait(lg="w", vm="u" if lateral else None, oldest=True)
                        e("s_barrier")
                    if nxt < 81:
                        g.ds(bread(nxt, 0, kouter), "B%d" % (nxt % 9))
                    elif not last:
                        g.ds(bread(nxt - 81, 2 * ROWB), "B%d" % (nxt % 9))
                run(items[cuts[mt]:cuts[mt + 1]])
            for x in lms:
                e(x[1])
        run(post)
        if not last:
            for d in range(3):
                e("v_add_u32 v%d, %d, v%d" % (vB[d], 2 * ROWB, vB[d]))
        if first:
            e("v_sub_u32 v%d, v%d, v%d" % (vTa, vP2, vP))
            e("v_add_u32 v%d, v%d, v%d" % (vO2, vO, vTa))
            for t in range(2):
                run(drain_items(t, 0))
                run(drain_items(t, 1))
                run(adv_o(t))

    step(first=True, lateral=True, last=False)
    stamp(6)
    e("s_mov_b32 s%d, 0" % sLoop)
    g.label("L_loop")
    base = len(g.out)
    bodies = []
    n = 0
    while True:
        st_in = (list(g.lg), list(g.vm))
        del g.out[base:]
        step(first=False, lateral=True, last=False)
        bodies.append(g.out[base:])
        n += 1
        if (g.lg, g.vm) == st_in:
            break
        assert n < 8
    for other in bodies[:-1]:
        assert len(other) == len(bodies[-1])
        for a, b in zip(other, bodies[-1]):
            if isinstance(a, Wait):
                b.merge(a)
            else:
                assert a == b
    e("s_add_u32 s%d, s%d, 1" % (sLoop, sLoop))
    e("s_cmp_lt_u32 s%d, 4" % sLoop)
    e("s_cbranch_scc1 L_loop")
    stamp(7)
    step(first=False, lateral=False, last=True)
    e("s_nop 7")
    run(drain_items(2, 0))
    run(drain_items(2, 1))
    if STAMPS:
        stamp(8)
        g.drain(vm=True)
        stamp(9)
        if "dbg" in EXP:
            e("s_memrealtime s[100:101]")
            e("s_waitcnt lgkmcnt(0)")
            e("s_mov_b32 s%d, s100" % (ST0 + 11))
            nst[0] = 12
            e("s_load_dwordx2 s[40:41], s[0:1], 40")
            e("s_waitcnt lgkmcnt(0)")
            srd(S_CF, 40, 256)
            e("s_lshl_b32 s%d, s2, 2" % sT[0])
            e("s_add_u32 s%d, s%d, s%d" % (sT[0], sT[0], sW))
            e("s_cmp_eq_u32 s%d, 400" % sT[0])
            e("s_cselect_b32 s%d, 0, 0x1000" % sT[0])
        else:
            e("s_load_dwordx2 s[40:41], s[0:1], 48")
            e("s_waitcnt lgkmcnt(0)")
            srd(S_CF, 40, 268435456)
            e("s_lshl_b32 s%d, s2, 2" % sT[0])
            e("s_add_u32 s%d, s%d, s%d" % (sT[0], sT[0], sW))
            e("s_lshl_b32 s%d, s%d, 7" % (sT[0], sT[0]))
        e("v_mov_b32 v1, 0")
        for i in range(nst[0]):
            e("v_mov_b32 v2, s%d" % (ST0 + i))
            e("buffer_store_dword v2, v1, s[%d:%d], s%d offen offset:%d" % (S_CF, S_CF + 3, sT[0], 4 * i))
        print("stamps:", nst[0])
    g.label("L_end")
    e("s_endpgm")
    g.out.append('.section .rodata,"a"')
    g.out.append(".p2align 6")
    g.out.append(".amdhsa_kernel %s_kernel" % NAME)
    g.out.append("  .amdhsa_next_free_vgpr 512")
    g.out.append("  .amdhsa_next_free_sgpr 102")
    g.out.append("  .amdhsa_accum_offset 256")
    g.out.append("  .amdhsa_group_segment_fixed_size 0")
    g.out.append("  .amdhsa_kernarg_size 56")
    g.out.append("  .amdhsa_user_sgpr_count 2")
    g.out.append("  .amdhsa_user_sgpr_kernarg_segment_ptr 1")
    g.out.append("  .amdhsa_system_sgpr_workgroup_id_x 1")
    g.out.append(".end_amdhsa_kernel")
    outp = sys.argv[1] if len(sys.argv) > 1 else "cdna_kernels/%s.s" % NAME
    open(outp, "w").write(g.text())
    print("wrote", outp)


main()
```

```python
import sys, os
from collections import defaultdict

NAME = "standalone__detection_seg_fpn_lateral__vision"

ROWB = 9600
PB = 14 * ROWB
DUMMY = PB
PS0 = PB + 192
LDS_TOTAL = 163840
OOB = 0x40000000
LDS_DROP = 0x30000
SLOT = [4, 6, 8, 10, 12]
WLROW = SLOT[0]
TAPROW = [12, 10, 8, 6, 12, 10, 8, 12, 10]
TAP_ISSUE = {1: 4, 2: 5, 3: 6, 5: 7, 6: 8}

S_CF, S_P, S_WL, S_W, S_O = 4, 8, 12, 16, 20
sW, sH, sS, sBY, sBX, sY0 = 24, 25, 26, 27, 28, 29
sCFd, sRow, sPg, sPl = 30, 31, 32, 33
sO = [34, 35, 36]
sLoop = 37
sT = [38, 39, 50, 51, 52, 53, 54, 55]
sFlW, sDirR, sDirP, sPi = 56, 57, 58, 59
sLoW, sGoW, sPw1, sPw2 = 60, 61, 62, 63
sYb, sDir, sF = 40, 41, 42
sDj = [96, 97, 98]
sRot = 99
ST0 = 64

vTa2, vD, vTm2 = 0, 1, 2
vO2 = 2
vCR, vP, vO = 3, 4, 5
vB = [6, 7, 8]
vWr = [9, 10]
vP2 = 11
ACC = 12
BBUF = [48, 52, 56, 60, 64, 68, 244, 248, 252]
LACC = 72
CF = 84
PV = 120
vTa, vTm = 138, 139
WL = 140
WV = 176
LEAD = int(os.environ.get("LEAD", "8"))

STAMPS = int(os.environ.get("STAMPS", "0"))
EXP = os.environ.get("EXP", "")


def wreg(f):
    if f < 64:
        return "a[%d:%d]" % (4 * f, 4 * f + 3)
    r = WV + 4 * (f - 64)
    return "v[%d:%d]" % (r, r + 3)


def wreg_half(f, half):
    if f < 64:
        r = 4 * f + 2 * half
        return "a[%d:%d]" % (r, r + 1)
    r = WV + 4 * (f - 64) + 2 * half
    return "v[%d:%d]" % (r, r + 1)


def v4(r):
    return "v[%d:%d]" % (r, r + 3)


def v2(r):
    return "v[%d:%d]" % (r, r + 1)


class Wait:
    def __init__(self, vm, lg):
        self.vm, self.lg = vm, lg

    def merge(self, o):
        f = lambda a, b: b if a is None else (a if b is None else min(a, b))
        self.vm, self.lg = f(self.vm, o.vm), f(self.lg, o.lg)

    def text(self):
        parts = []
        if self.vm is not None:
            parts.append("vmcnt(%d)" % self.vm)
        if self.lg is not None:
            parts.append("lgkmcnt(%d)" % self.lg)
        return ("    s_waitcnt " + " ".join(parts)) if parts else None


class Gen:
    def __init__(self):
        self.out = []
        self.lg = []
        self.vm = []

    def e(self, s):
        self.out.append("    " + s)

    def label(self, s):
        self.out.append(s + ":")

    def ds(self, s, tag=None):
        self.e(s)
        self.lg.append(tag)

    def vmem(self, s, tag=None):
        self.e(s)
        self.vm.append(tag)

    def _need(self, q, tag, mx, oldest=False):
        if tag is None or tag not in q:
            return None
        if oldest:
            pos = [i for i, x in enumerate(q) if x == tag]
            idx = pos[min(6, len(pos) - 1)]
        else:
            idx = len(q) - 1 - q[::-1].index(tag)
        n = len(q) - 1 - idx
        n = min(n, mx)
        del q[: len(q) - n]
        return n

    def wait(self, lg=None, vm=None, oldest=False):
        self.out.append(Wait(self._need(self.vm, vm, 63, oldest), self._need(self.lg, lg, 15)))

    def drain(self, lg=False, vm=False):
        self.out.append(Wait(0 if vm else None, 0 if lg else None))
        if vm:
            self.vm = []
        if lg:
            self.lg = []

    def text(self):
        r = []
        for x in self.out:
            if isinstance(x, Wait):
                t = x.text()
                if t:
                    r.append(t)
            else:
                r.append(x)
        return "\n".join(r) + "\n"


g = Gen()
e = g.e
nst = [0]


def stamp(i=None):
    if not STAMPS:
        return
    if i is None:
        i = nst[0]
    nst[0] = max(nst[0], i + 1)
    e("s_memtime s[100:101]")
    e("s_waitcnt lgkmcnt(0)")
    e("s_mov_b32 s%d, s100" % (ST0 + i))


def srd(d, ptr, nbytes):
    e("s_mov_b32 s%d, s%d" % (d, ptr))
    e("s_and_b32 s%d, s%d, 0xffff" % (d + 1, ptr + 1))
    e("s_mov_b32 s%d, 0x%x" % (d + 2, nbytes))
    e("s_mov_b32 s%d, 0x00020000" % (d + 3))


def lat_init(acc, pv):
    r = []
    for mt in range(3):
        a = acc + 4 * mt
        p = pv + 2 * mt
        r.append("v_lshlrev_b32 v%d, 16, v%d" % (a, p))
        r.append("v_and_b32 v%d, 0xffff0000, v%d" % (a + 1, p))
        r.append("v_lshlrev_b32 v%d, 16, v%d" % (a + 2, p + 1))
        r.append("v_and_b32 v%d, 0xffff0000, v%d" % (a + 3, p + 1))
    return r


def lat_mfma(acc, cf, ks, mt):
    a = acc + 4 * mt
    return "v_mfma_f32_16x16x32_bf16 %s, %s, %s, %s" % (
        v4(a), v4(WL + (ks * 3 + mt) * 4), v4(cf + 4 * ks), v4(a))


def run(items):
    for kind, s, tag in items:
        if kind == "vm":
            g.vmem(s, tag)
        elif kind == "vmx":
            e("s_mov_b64 exec, 0xffffffff")
            g.vmem(s, tag)
            e("s_mov_b64 exec, -1")
        elif kind == "vm8":
            e("s_mov_b64 exec, 0xff")
            g.vmem(s, tag)
            e("s_mov_b64 exec, -1")
        elif kind == "ds":
            g.ds(s, tag)
        elif kind == "wvm":
            g.wait(vm=tag)
        elif kind == "wlg":
            g.wait(lg=tag)
        else:
            e(s)


def w_dma(srd_reg, row, tau, tag):
    r = []
    r.append(("i", "s_add_u32 m0, s%d, %d" % (sLoW, row * ROWB), None))
    if tau is None:
        r.append(("i", "s_mov_b32 s%d, s%d" % (sT[7], sGoW), None))
    else:
        r.append(("i", "s_add_u32 s%d, s%d, %d" % (sT[7], sDj[tau % 3], (tau // 3) * 3 * 18432), None))
        if tau // 3 == 0:
            r.append(("i", "s_add_u32 s%d, s%d, s%d" % (sT[7], sT[7], sFlW), None))
        elif tau // 3 == 2:
            r.append(("i", "s_sub_u32 s%d, s%d, s%d" % (sT[7], sT[7], sFlW), None))
    for k in range(4):
        r.append(("vm", "buffer_load_dwordx4 v%d, s[%d:%d], s%d offen offset:%d lds" % (
            vD, srd_reg, srd_reg + 3, sT[7], 1024 * k), tag))
    r.append(("i", "s_add_u32 m0, m0, 4096", None))
    r.append(("i", "s_add_u32 s%d, s%d, 4096" % (sT[7], sT[7]), None))
    r.append(("vmx", "buffer_load_dwordx4 v%d, s[%d:%d], s%d offen lds" % (vD, srd_reg, srd_reg + 3, sT[7]), tag))
    return r


def raw_dma(tag):
    r = []
    r.append(("i", "s_add_u32 m0, s%d, s%d" % (sLoW, sRow), None))
    r.append(("i", "s_nop 0", None))
    for k in range(4):
        r.append(("vm", "buffer_load_dwordx4 v%d, s[%d:%d], s%d offen offset:%d nt lds" % (
            vD, S_CF, S_CF + 3, sCFd, 1024 * k), tag))
    r.append(("i", "s_add_u32 m0, m0, 4096", None))
    r.append(("i", "s_add_u32 s%d, s%d, 4096" % (sT[7], sCFd), None))
    r.append(("vmx", "buffer_load_dwordx4 v%d, s[%d:%d], s%d offen nt lds" % (vD, S_CF, S_CF + 3, sT[7]), tag))
    return r


def raw_adv():
    return [("i", "s_add_u32 s%d, s%d, s%d" % (sCFd, sCFd, sDirR), None),
            ("i", "s_add_u32 s%d, s%d, %d" % (sRow, sRow, 2 * ROWB), None)]


def p_dma(tag):
    r = []
    r.append(("i", "s_add_u32 m0, s%d, s%d" % (sPl, sPw1), None))
    r.append(("i", "s_add_u32 s%d, s%d, s%d" % (sT[7], sPg, sPw1), None))
    r.append(("vm", "buffer_load_dwordx4 v%d, s[%d:%d], s%d offen nt lds" % (vD, S_P, S_P + 3, sT[7]), tag))
    r.append(("i", "s_add_u32 m0, s%d, s%d" % (sPl, sPw2), None))
    r.append(("i", "s_add_u32 s%d, s%d, s%d" % (sT[7], sPg, sPw2), None))
    r.append(("vm8", "buffer_load_dwordx4 v%d, s[%d:%d], s%d offen nt lds" % (vD, S_P, S_P + 3, sT[7]), tag))
    return r


def p_adv():
    return [("i", "s_add_u32 s%d, s%d, s%d" % (sPg, sPg, sDirP), None),
            ("i", "s_add_u32 s%d, s%d, 4608" % (sPl, sPl), None),
            ("i", "s_cmp_eq_u32 s%d, %d" % (sPl, PS0 + 6 * 4608), None),
            ("i", "s_cselect_b32 s%d, %d, s%d" % (sPl, PS0, sPl), None)]


def tr_items(regfn, tag):
    r = []
    for ks in range(3):
        for mt in range(3):
            for half in range(2):
                co = 8 * mt if mt < 2 else 0
                if ks == 0:
                    a, o = (vTa if mt < 2 else vTa2), 768 * half + co
                elif ks == 1:
                    a, o = (vTm if mt < 2 else vTm2), 6144 + 768 * half + co
                else:
                    a, o = (vTa if mt < 2 else vTa2), ROWB + 3072 + 768 * half + co
                r.append(("ds", "ds_read_b64_tr_b16 %s, v%d offset:%d" % (regfn(ks, mt, half), a, o), tag))
    return r


trrow = [WLROW]


def tr_goto(row):
    d = (row - trrow[0]) * ROWB
    trrow[0] = row
    if d == 0:
        return []
    return [("i", "v_add_u32 v%d, 0x%x, v%d" % (x, d & 0xffffffff, x), None) for x in (vTa, vTm, vTa2, vTm2)]


def read_wl():
    run(tr_goto(WLROW))
    run(tr_items(lambda ks, mt, half: v2(WL + (ks * 3 + mt) * 4 + 2 * half), "wf"))


def read_tap(tau):
    run(tr_goto(TAPROW[tau]))
    run(tr_items(lambda ks, mt, half: wreg_half((tau * 3 + ks) * 3 + mt, half), "wf"))


def pack_items(a):
    return [("i", "v_cvt_pk_bf16_f32 v%d, v%d, v%d" % (a, a, a + 1), None),
            ("i", "v_cvt_pk_bf16_f32 v%d, v%d, v%d" % (a + 1, a + 2, a + 3), None),
            ("i", "v_cvt_pk_bf16_f32 v%d, v%d, v%d" % (a + 2, a + 4, a + 5), None),
            ("i", "v_cvt_pk_bf16_f32 v%d, v%d, v%d" % (a + 3, a + 6, a + 7), None),
            ("i", "v_cvt_pk_bf16_f32 v%d, v%d, v%d" % (a + 8, a + 8, a + 9), None),
            ("i", "v_cvt_pk_bf16_f32 v%d, v%d, v%d" % (a + 9, a + 10, a + 11), None)]


def raw_reads(cf, off, tag):
    r = []
    for t in range(3):
        for ks in range(3):
            r.append(("ds", "ds_read_b128 %s, v%d offset:%d" % (
                v4(cf + (t * 3 + ks) * 4), vCR, off + t * 3072 + 64 * ks), tag))
    return r


def p_reads(off, tag):
    r = []
    for t in range(3):
        r.append(("ds", "ds_read_b128 %s, v%d offset:%d" % (v4(PV + t * 6), vP, off + 1536 * t), tag))
        r.append(("ds", "ds_read_b64 %s, v%d offset:%d" % (v2(PV + t * 6 + 4), vP2, off + 1536 * t), tag))
    return r


def main():
    hdr = open("cdna_kernels/%s.s.ref" % NAME).read().split("\n")
    for ln in hdr:
        if ln.startswith("; @launch"):
            break
        g.out.append(ln)
    g.out.append("; @launch grid=(256,1,1) block=(256,1,1) lds=%d" % LDS_TOTAL)
    g.out.append('.amdgcn_target "amdgcn-amd-amdhsa--gfx950"')
    g.out.append(".text")
    g.out.append(".globl %s_kernel" % NAME)
    g.out.append(".p2align 8")
    g.out.append(".type %s_kernel,@function" % NAME)
    g.label("%s_kernel" % NAME)

    e("s_cmp_ge_u32 s2, 256")
    e("s_cbranch_scc1 L_end")
    e("s_load_dwordx8 s[40:47], s[0:1], 0")
    e("s_load_dwordx2 s[48:49], s[0:1], 32")
    stamp()
    if "dbg" in EXP:
        e("s_memrealtime s[100:101]")
        e("s_waitcnt lgkmcnt(0)")
        e("s_mov_b32 s%d, s100" % (ST0 + 10))
    vL, vN, vQ, vT0, vT1, vT2, vT3, vT4 = 244, 245, 246, 247, 248, 249, 250, 251
    CF2 = 12
    HCF, HPV = 48, 60
    vHc, vHp, vHp2, vHw, vHw2 = 66, 67, 68, 69, 70
    LACC2 = 244
    e("v_and_b32 v%d, 63, v0" % vL)
    e("v_lshrrev_b32 v%d, 6, v0" % vT0)
    e("v_and_b32 v%d, 15, v%d" % (vN, vL))
    e("v_lshrrev_b32 v%d, 4, v%d" % (vQ, vL))
    e("v_readfirstlane_b32 s%d, v%d" % (sW, vT0))
    e("v_lshlrev_b32 v%d, 4, v%d" % (vD, vL))
    e("s_nop 2")
    e("s_and_b32 s%d, s%d, 1" % (sH, sW))
    e("s_lshr_b32 s%d, s%d, 1" % (sS, sW))
    e("s_lshr_b32 s%d, s2, 3" % sBY)
    e("s_and_b32 s%d, s2, 7" % sBX)
    e("s_mul_i32 s%d, s%d, 12" % (sY0, sBY))
    e("s_mul_i32 s%d, s%d, 9216" % (sT[0], sBX))
    e("s_mul_i32 s%d, s%d, 96" % (sT[1], sH))
    e("s_mul_i32 s%d, s%d, %d" % (sT[2], sS, ROWB))
    e("s_mul_i32 s%d, s%d, 4608" % (sT[3], sBX))
    e("s_mul_i32 s%d, s%d, 4608" % (sGoW, sW))
    e("s_mul_i32 s%d, s%d, 4608" % (sLoW, sH))
    e("s_add_u32 s%d, s%d, s%d" % (sLoW, sLoW, sT[2]))
    e("s_add_u32 s%d, s%d, 192" % (sLoW, sLoW))
    e("s_lshl_b32 s%d, s%d, 10" % (sPw1, sW))
    e("s_lshl_b32 s%d, s%d, 7" % (sPw2, sW))
    e("s_add_u32 s%d, s%d, 4096" % (sPw2, sPw2))
    e("s_waitcnt lgkmcnt(0)")
    srd(S_CF, 40, 28311552)
    srd(S_P, 42, 7077888)
    srd(S_WL, 44, 18432)
    srd(S_W, 46, 165888)
    srd(S_O, 48, 28311552)
    flip_src = "s_and_b32 s%d, s%d, 1" % (sF, sBY)
    if "noflip" in EXP:
        flip_src = "s_mov_b32 s%d, 0" % sF
    e(flip_src)
    e("s_mul_i32 s%d, s%d, 110592" % (sFlW, sF))
    e("s_lshr_b32 s%d, s%d, 1" % (sRot, sBY))
    e("s_mul_i32 s%d, s%d, 11" % (sT[4], sRot))
    e("s_lshr_b32 s%d, s%d, 5" % (sT[4], sT[4]))
    e("s_mul_i32 s%d, s%d, 3" % (sT[4], sT[4]))
    e("s_sub_u32 s%d, s%d, s%d" % (sRot, sRot, sT[4]))
    if "norot" in EXP:
        e("s_mov_b32 s%d, 0" % sRot)
    for k in range(3):
        e("s_add_u32 s%d, s%d, %d" % (sT[4], sRot, k))
        e("s_cmp_ge_u32 s%d, 3" % sT[4])
        e("s_cselect_b32 s%d, 3, 0" % sT[5])
        e("s_sub_u32 s%d, s%d, s%d" % (sT[4], sT[4], sT[5]))
        e("s_mul_i32 s%d, s%d, 18432" % (sDj[k], sT[4]))
        e("s_add_u32 s%d, s%d, s%d" % (sDj[k], sDj[k], sGoW))
    e("s_lshl_b32 s%d, s%d, 1" % (sDir, sF))
    e("s_sub_u32 s%d, 1, s%d" % (sDir, sDir))
    e("s_mul_i32 s%d, s%d, 13" % (sYb, sF))
    e("s_add_u32 s%d, s%d, s%d" % (sYb, sYb, sY0))
    e("s_sub_u32 s%d, s%d, 1" % (sYb, sYb))
    e("s_mul_i32 s%d, s%d, %d" % (sDirR, sDir, 2 * 73728))
    e("s_mul_i32 s%d, s%d, 36864" % (sDirP, sDir))
    e("s_mul_i32 s%d, s%d, s%d" % (sT[4], sDir, sS))
    e("s_add_u32 s%d, s%d, s%d" % (sT[4], sT[4], sYb))
    e("s_mul_i32 s%d, s%d, 73728" % (sCFd, sT[4]))
    e("s_mul_i32 s%d, s%d, 4608" % (sT[5], sH))
    e("s_add_u32 s%d, s%d, s%d" % (sCFd, sCFd, sT[5]))
    e("s_add_u32 s%d, s%d, s%d" % (sCFd, sCFd, sT[0]))
    e("s_mov_b32 s%d, 0" % sRow)
    e("s_mul_i32 s%d, s%d, 6" % (sT[5], sBY))
    e("s_mul_i32 s%d, s%d, 7" % (sT[6], sF))
    e("s_add_u32 s%d, s%d, s%d" % (sT[5], sT[5], sT[6]))
    e("s_sub_u32 s%d, s%d, 1" % (sT[5], sT[5]))
    e("s_mul_i32 s%d, s%d, 36864" % (sPg, sT[5]))
    e("s_add_u32 s%d, s%d, s%d" % (sPg, sPg, sT[3]))
    e("s_mov_b32 s%d, %d" % (sPl, PS0))
    e("s_add_u32 s%d, s%d, s%d" % (sT[6], sT[4], sDir))
    e("s_mul_i32 s%d, s%d, 73728" % (sO[0], sT[6]))
    e("s_add_u32 s%d, s%d, 3072" % (sO[1], sO[0]))
    e("s_add_u32 s%d, s%d, 6144" % (sO[2], sO[0]))
    e("s_sub_u32 s%d, s%d, s%d" % (sO[2], sO[2], sDirR))

    run(w_dma(S_WL, WLROW, None, "a"))
    e("s_mov_b32 s%d, s%d" % (sT[6], sCFd))
    e("s_cmp_lt_i32 s%d, 0" % sCFd)
    e("s_cselect_b32 s%d, 0x%x, s%d" % (sCFd, OOB, sCFd))
    run(raw_dma("a"))
    e("s_mov_b32 s%d, s%d" % (sCFd, sT[6]))
    run(raw_adv())
    e("s_mov_b32 s%d, s%d" % (sT[6], sPg))
    e("s_cmp_lt_i32 s%d, 0" % sPg)
    e("s_cselect_b32 s%d, 0x%x, s%d" % (sPg, OOB, sPg))
    run(p_dma("a"))
    e("s_mov_b32 s%d, s%d" % (sPg, sT[6]))
    run(p_adv())
    run(p_dma("a"))
    run(p_adv())
    run(raw_dma("b"))
    run(raw_adv())
    run(p_dma("b"))
    run(p_adv())

    e("v_mul_u32_u24 v%d, 192, v%d" % (vT0, vN))
    e("v_lshl_add_u32 v%d, v%d, 4, v%d" % (vT1, vQ, vT0))
    e("v_add_u32 v%d, s%d, v%d" % (vO, sT[0], vT1))
    e("v_add_u32 v%d, s%d, v%d" % (vO, sT[1], vO))
    e("v_add_u32 v%d, s%d, v%d" % (vCR, sT[2], vT1))
    e("v_add_u32 v%d, 192, v%d" % (vCR, vCR))
    e("v_lshrrev_b32 v%d, 1, v%d" % (vT1, vN))
    e("v_mul_u32_u24 v%d, 192, v%d" % (vT1, vT1))
    e("s_mul_i32 s%d, s%d, 4608" % (sT[5], sS))
    e("s_add_u32 s%d, s%d, %d" % (sT[5], sT[5], PS0))
    e("s_add_u32 s%d, s%d, s%d" % (sT[5], sT[5], sT[1]))
    e("v_add_u32 v%d, s%d, v%d" % (vT1, sT[5], vT1))
    e("v_lshl_add_u32 v%d, v%d, 4, v%d" % (vP, vQ, vT1))
    e("v_lshl_add_u32 v%d, v%d, 3, v%d" % (vP2, vQ, vT1))
    e("v_add_u32 v%d, 64, v%d" % (vP2, vP2))
    e("s_mul_i32 s%d, s%d, 48" % (sT[4], sBX))
    e("s_mul_i32 s%d, s%d, 49" % (sT[5], sS))
    e("s_add_u32 s%d, s%d, s%d" % (sT[4], sT[4], sT[5]))
    e("s_sub_u32 s%d, s%d, 1" % (sT[4], sT[4]))
    e("v_mul_lo_u32 v%d, v%d, s%d" % (vT1, vN, sDir))
    e("v_add_u32 v%d, s%d, v%d" % (vT1, sYb, vT1))
    e("v_cmp_gt_u32 vcc, 0x180, v%d" % vT1)
    e("v_cmp_gt_u32 s[44:45], 14, v%d" % vN)
    e("s_and_b64 vcc, vcc, s[44:45]")
    e("s_cmp_lt_u32 s%d, 384" % sT[4])
    e("s_cselect_b64 s[46:47], -1, 0")
    e("s_and_b64 vcc, vcc, s[46:47]")
    e("v_mul_u32_u24 v%d, 384, v%d" % (vT2, vT1))
    e("v_add_u32 v%d, s%d, v%d" % (vT2, sT[4], vT2))
    e("v_mul_u32_u24 v%d, 192, v%d" % (vT2, vT2))
    e("v_lshl_add_u32 v%d, v%d, 4, v%d" % (vT2, vQ, vT2))
    e("v_mov_b32 v%d, 0x%x" % (vT3, OOB))
    e("v_cndmask_b32 v%d, v%d, v%d, vcc" % (vHc, vT3, vT2))
    e("v_lshrrev_b32 v%d, 1, v%d" % (vT2, vT1))
    e("v_mul_u32_u24 v%d, 192, v%d" % (vT2, vT2))
    e("s_lshr_b32 s%d, s%d, 1" % (sT[5], sT[4]))
    e("v_add_u32 v%d, s%d, v%d" % (vT2, sT[5], vT2))
    e("v_mul_u32_u24 v%d, 192, v%d" % (vT2, vT2))
    e("v_add_u32 v%d, s%d, v%d" % (vT2, sT[1], vT2))
    e("v_lshl_add_u32 v%d, v%d, 4, v%d" % (vT4, vQ, vT2))
    e("v_cndmask_b32 v%d, v%d, v%d, vcc" % (vHp, vT3, vT4))
    e("v_lshl_add_u32 v%d, v%d, 3, v%d" % (vT4, vQ, vT2))
    e("v_add_u32 v%d, 64, v%d" % (vT4, vT4))
    e("v_cndmask_b32 v%d, v%d, v%d, vcc" % (vHp2, vT3, vT4))
    e("v_mul_u32_u24 v%d, %d, v%d" % (vT2, ROWB, vN))
    e("s_mul_i32 s%d, s%d, %d" % (sT[5], sS, 49 * 192))
    e("v_add_u32 v%d, s%d, v%d" % (vT2, sT[5], vT2))
    e("v_mov_b32 v%d, 0x%x" % (vT3, DUMMY))
    e("v_cndmask_b32 v%d, v%d, v%d, s[44:45]" % (vT2, vT3, vT2))
    e("v_add_u32 v%d, s%d, v%d" % (vT2, sT[1], vT2))
    e("v_lshl_add_u32 v%d, v%d, 4, v%d" % (vHw, vQ, vT2))
    e("v_lshl_add_u32 v%d, v%d, 3, v%d" % (vHw2, vQ, vT2))
    e("v_add_u32 v%d, 64, v%d" % (vHw2, vHw2))
    for d in range(3):
        e("s_add_u32 s%d, s%d, %d" % (sT[4], sRot, d))
        e("s_cmp_ge_u32 s%d, 3" % sT[4])
        e("s_cselect_b32 s%d, 3, 0" % sT[5])
        e("s_sub_u32 s%d, s%d, s%d" % (sT[4], sT[4], sT[5]))
        e("v_add_u32 v%d, s%d, v%d" % (vT1, sT[4], vN))
        e("v_bfe_u32 v%d, v%d, 2, 1" % (vT2, vT1))
        e("v_lshlrev_b32 v%d, 5, v%d" % (vT2, vT2))
        e("v_lshlrev_b32 v%d, 4, v%d" % (vT3, vQ))
        e("v_xor_b32 v%d, v%d, v%d" % (vT2, vT2, vT3))
        e("v_mul_u32_u24 v%d, 192, v%d" % (vT1, vT1))
        e("v_add3_u32 v%d, v%d, v%d, s%d" % (vB[d], vT1, vT2, sT[2]))
    e("v_add_u32 v%d, 1, v%d" % (vT1, vN))
    e("v_bfe_u32 v%d, v%d, 2, 1" % (vT2, vT1))
    e("v_lshlrev_b32 v%d, 5, v%d" % (vT2, vT2))
    e("v_mul_u32_u24 v%d, 192, v%d" % (vT1, vT1))
    e("v_lshlrev_b32 v%d, 4, v%d" % (vT3, vQ))
    e("v_add_u32 v%d, s%d, v%d" % (vT3, sT[1], vT3))
    e("v_xor_b32 v%d, v%d, v%d" % (vT3, vT3, vT2))
    e("v_add3_u32 v%d, v%d, v%d, s%d" % (vWr[0], vT1, vT3, sT[2]))
    e("v_lshlrev_b32 v%d, 3, v%d" % (vT3, vQ))
    e("v_add_u32 v%d, s%d, v%d" % (vT3, sT[1], vT3))
    e("v_add_u32 v%d, 64, v%d" % (vT3, vT3))
    e("v_xor_b32 v%d, v%d, v%d" % (vT3, vT3, vT2))
    e("v_add3_u32 v%d, v%d, v%d, s%d" % (vWr[1], vT1, vT3, sT[2]))
    e("v_lshrrev_b32 v%d, 2, v%d" % (vT1, vN))
    e("v_lshl_add_u32 v%d, v%d, 3, v%d" % (vT1, vQ, vT1))
    e("v_mul_u32_u24 v%d, 192, v%d" % (vT1, vT1))
    e("v_add_u32 v%d, s%d, v%d" % (vT1, sT[1], vT1))
    e("v_add_u32 v%d, 0x%x, v%d" % (vT1, WLROW * ROWB + 192, vT1))
    e("v_and_b32 v%d, 3, v%d" % (vT2, vN))
    e("v_lshl_add_u32 v%d, v%d, 4, v%d" % (vTa, vT2, vT1))
    e("v_lshl_add_u32 v%d, v%d, 3, v%d" % (vTa2, vT2, vT1))
    e("v_add_u32 v%d, 64, v%d" % (vTa2, vTa2))
    e("v_lshrrev_b32 v%d, 1, v%d" % (vT2, vQ))
    e("v_mul_u32_u24 v%d, 384, v%d" % (vT2, vT2))
    e("v_add_u32 v%d, v%d, v%d" % (vTm, vTa, vT2))
    e("v_add_u32 v%d, v%d, v%d" % (vTm2, vTa2, vT2))
    stamp()

    def issue_halo():
        for ks in range(3):
            g.vmem("buffer_load_dwordx4 %s, v%d, s[%d:%d], 0 offen offset:%d" % (
                v4(HCF + 4 * ks), vHc, S_CF, S_CF + 3, 64 * ks), "h")
        g.vmem("buffer_load_dwordx4 %s, v%d, s[%d:%d], 0 offen" % (v4(HPV), vHp, S_P, S_P + 3), "h")
        g.vmem("buffer_load_dwordx2 %s, v%d, s[%d:%d], 0 offen" % (v2(HPV + 4), vHp2, S_P, S_P + 3), "h")

    def issue_unit(tag):
        run(raw_dma(tag))
        run(raw_adv())
        run(p_dma(tag))
        run(p_adv())

    def bar():
        e("s_barrier")

    def front():
        trrow[0] = WLROW
        issue_halo()
        NT0 = int(os.environ.get("NT0", "0"))
        for tau in range(NT0):
            run(w_dma(S_W, TAPROW[tau], tau, "t%d" % tau))
        stamp(2)
        g.wait(vm="a")
        bar()
        stamp(3)
        pr = p_reads(0, "x")
        rr = raw_reads(CF, 0, "x")
        run([(k, a, "p0") for (k, a, _) in pr])
        run([(k, a, "c0") for (k, a, _) in rr[:3]])
        read_wl()
        run([(k, a, "c1") for (k, a, _) in rr[3:]])

        tiles = []
        for t in range(3):
            tiles.append((CF + t * 12, PV + t * 6, vWr, t * 3072))
        tiles.append((HCF, HPV, [vHw, vHw2], 0))
        for t in range(3):
            tiles.append((CF2 + t * 12, PV + t * 6, vWr, 2 * ROWB + t * 3072))
        accs = [LACC, LACC2]

        def fin_items(i):
            cf, pv, wa, wo = tiles[i]
            a = accs[i % 2]
            r = pack_items(a)
            r.append(("ds", "ds_write_b128 v%d, %s offset:%d" % (wa[0], v4(a), wo), "w"))
            r.append(("ds", "ds_write_b64 v%d, %s offset:%d" % (wa[1], v2(a + 8), wo), "w"))
            return r

        g.wait(lg="p0")
        for s_ in lat_init(accs[0], tiles[0][1]):
            e(s_)
        g.wait(lg="wf")
        for i in range(len(tiles)):
            cf, pv, wa, wo = tiles[i]
            acc = accs[i % 2]
            gaps = defaultdict(list)
            if i == 1:
                gaps[2] += [("wlg", None, "c1"), ("wvm", None, "b"), ("i", "s_barrier", None)]
                gaps[2] += raw_reads(CF2, 2 * ROWB, "c2")[:5]
                gaps[3] += raw_reads(CF2, 2 * ROWB, "c2")[5:]
            if i == 5:
                gaps[2] += [("i", "s_barrier", None)]
            if i > 0:
                f = fin_items(i - 1)
                gaps[4] += f[:4]
                gaps[5] += f[4:]
            if i == 2:
                gaps[6] += p_reads(4608, "p1")
            if NT0 + i < 4:
                gaps[9] += w_dma(S_W, TAPROW[NT0 + i], NT0 + i, "t%d" % (NT0 + i))
            if i + 1 < len(tiles):
                ini = [("i", s_, None) for s_ in lat_init(accs[(i + 1) % 2], tiles[i + 1][1])]
                if i + 1 == 3:
                    ini = [("wvm", None, "h")] + ini
                if i + 1 == 4:
                    ini = [("wlg", None, "p1")] + ini
                gaps[6] += ini[:5]
                gaps[7] += ini[5:9]
                gaps[8] += ini[9:]
            if i == 1:
                g.wait(lg="c1")
            if i == 4:
                g.wait(lg="c2")
            k = 0
            for ks in range(3):
                for mt in range(3):
                    e(lat_mfma(acc, cf, ks, mt))
                    k += 1
                    run(gaps[k])
            e("s_nop 0")
        e("s_nop 7")
        run(fin_items(len(tiles) - 1))
        stamp(4)
        issue_unit("u2")
        g.wait(vm="t0", lg="w")
        bar()
        read_tap(0)
        stamp(5)

    front()

    for x in vWr + [vCR]:
        e("v_add_u32 v%d, %d, v%d" % (x, 4 * ROWB, x))
    e("v_add_u32 v%d, %d, v%d" % (vP, 2 * 4608, vP))
    e("v_add_u32 v%d, %d, v%d" % (vP2, 2 * 4608, vP2))
    e("s_add_u32 s%d, s%d, 2" % (sPi, sS))
    e("s_add_u32 s%d, s%d, s%d" % (sO[2], sO[2], sDirR))

    def slot_tk(sig, kouter):
        return (sig % 3, sig // 3) if kouter else (sig // 27, sig % 27)

    def bread(sig, bias, kouter=False):
        t, kap = slot_tk(sig, kouter)
        tau, ks = kap // 3, kap % 3
        di, dj = tau // 3, tau % 3
        off = di * ROWB + t * 3072 + 64 * ks + bias
        return "ds_read_b128 %s, v%d offset:%d" % (v4(BBUF[sig % 9]), vB[dj], off)

    for sig in range(LEAD):
        g.ds(bread(sig, 0, True), "B%d" % sig)

    def drain_items(t, part, so=None):
        a = ACC + t * 12
        p = pack_items(a)
        so = sO[t] if so is None else so
        if "nost" in EXP:
            return p[:4] if part == 0 else p[4:]
        if part == 0:
            return p[:4] + [("vm", "buffer_store_dwordx4 %s, v%d, s[%d:%d], s%d offen" % (
                v4(a), vO, S_O, S_O + 3, so), "st")]
        return p[4:] + [("vm", "buffer_store_dwordx2 %s, v%d, s[%d:%d], s%d offen" % (
            v2(a + 8), vO2, S_O, S_O + 3, so), "st")]

    def adv_o(t):
        return [("i", "s_add_u32 s%d, s%d, s%d" % (sO[t], sO[t], sDirR), None)]

    def step(first, lateral, last):
        kouter = first
        pre = defaultdict(list)
        mid = defaultdict(list)
        LB = [12, 34, 56]
        comp = False
        post = []
        if not first:
            for t in range(3):
                tp = (t + 2) % 3
                d0 = drain_items(tp, 0)
                d1 = drain_items(tp, 1)
                mid[27 * t + 3] += d0[:2]
                mid[27 * t + 4] += d0[2:4]
                mid[27 * t + 5] += d0[4:]
                mid[27 * t + 7] += d1[:2]
                mid[27 * t + 8] += d1[2:]
                mid[27 * t + 9] += adv_o(tp)
            if lateral:
                rr = raw_reads(CF, 0, "rr")
                pr = p_reads(0, "rr")
                seq = []
                for t in range(3):
                    seq += [(k, a, "rr%d" % t) for (k, a, _) in pr[2 * t:2 * t + 2] + rr[3 * t:3 * t + 3]]
                for i, it in enumerate(seq):
                    mid[2 + i].append(it)
                for t in range(3):
                    pre[LB[t]].append(("wlg", None, "rr%d" % t))
                pre[26].append(("wlg", None, "rr2"))
                pre[26].append(("i", "s_barrier", None))
                mid[27].append(("i", "s_cmp_ge_u32 s%d, 2" % sLoop, None))
                mid[27].append(("i", "s_cselect_b32 s%d, 0x%x, s%d" % (sCFd, OOB, sCFd), None))
                mid[27].append(("i", "s_cselect_b32 s%d, 0x%x, s%d" % (sRow, LDS_DROP, sRow), None))
                mid[27].append(("i", "s_cselect_b32 s%d, 0x%x, s%d" % (sPg, OOB, sPg), None))
                mid[27].append(("i", "s_cselect_b32 s%d, 0x%x, s%d" % (sPl, LDS_DROP, sPl), None))
                dm = raw_dma("u") + raw_adv() + p_dma("u") + p_adv()
                pos = 38
                for it in dm:
                    mid[pos].append(it)
                    if it[0] in ("vm", "vmx", "vm8"):
                        pos += 2
        else:
            comp = True
            LB = [38, 50, 62]
            rr = raw_reads(CF, 0, "rr") + p_reads(0, "rr")
            for i, it in enumerate(rr):
                mid[28 + i // 2].append(it)
            dm = raw_dma("u")
            mid[48] += dm[:4]
            mid[49] += dm[4:]
            mid[50] += raw_adv()
            dm = p_dma("u")
            mid[51] += dm[:3]
            mid[52] += dm[3:]
            mid[53] += p_adv()
            dm = raw_dma("u")
            mid[66] += dm[:4]
            mid[67] += dm[4:]
            mid[68] += raw_adv()
            dm = p_dma("u")
            mid[69] += dm[:3]
            mid[70] += dm[3:]
            mid[71] += p_adv()
            for tau in range(1, 9):
                p = 9 * (tau - 1) + 1
                if "s0nowait" not in EXP:
                    pre[p].append(("wvm", None, "t%d" % tau))
                if tau == 4:
                    pre[p].append(("wvm", None, "u2"))
                if tau == 5:
                    pre[p].append(("wlg", None, "rr"))
                if "s0nobar" not in EXP:
                    pre[p].append(("i", "s_barrier", None))
                pre[p] += tr_goto(TAPROW[tau])
                tr = tr_items(lambda ks, mt, half, tau=tau: wreg_half((tau * 3 + ks) * 3 + mt, half), "wf%d" % tau)
                if "s0notr" in EXP:
                    tr = tr[:1]
                for i, it in enumerate(tr):
                    mid[p + i // 3].append(it)
                if tau in TAP_ISSUE:
                    nt = TAP_ISSUE[tau]
                    dm = w_dma(S_W, TAPROW[nt], nt, "t%d" % nt)
                    mid[p] = dm[:5] + mid[p]
                    mid[p + 1] = dm[5:] + mid[p + 1]
            pre[0].append(("wlg", None, "wf"))
            for tau in range(1, 9):
                pre[9 * tau].append(("wlg", None, "wf%d" % tau))
        if lateral:
            for t in range(3):
                b = LB[t]
                init = lat_init(LACC, PV + t * 6)
                ni, nm = (6, 2) if comp else (4, 1)
                for i, s_ in enumerate(init):
                    mid[b + i // ni].append(("i", s_, None))
                b1 = b + 12 // ni
                k = 0
                for ks in range(3):
                    for mt in range(3):
                        mid[b1 + k // nm].append(("lm", lat_mfma(LACC, CF + t * 12, ks, mt), None))
                        k += 1
                b2 = b1 + (8 // nm) + 3
                pk = pack_items(LACC)
                mid[b2] += pk[:4]
                mid[b2 + 1].append(("ds", "ds_write_b128 v%d, %s offset:%d" % (vWr[0], v4(LACC), t * 3072), "w"))
                mid[b2 + 1] += pk[4:]
                mid[b2 + 2].append(("ds", "ds_write_b64 v%d, %s offset:%d" % (vWr[1], v2(LACC + 8), t * 3072), "w"))
            post = [("i", "v_add_u32 v%d, %d, v%d" % (x, 2 * ROWB, x), None) for x in vWr + [vCR]]
            mid[76] += [("i", "s_mov_b32 s%d, 4608" % sT[5], None),
                        ("i", "s_add_u32 s%d, s%d, 1" % (sPi, sPi), None),
                        ("i", "s_cmp_eq_u32 s%d, 6" % sPi, None),
                        ("i", "s_cselect_b32 s%d, 0x%x, s%d" % (sT[5], (-5 * 4608) & 0xffffffff, sT[5]), None)]
            mid[78] += [("i", "v_add_u32 v%d, s%d, v%d" % (vP, sT[5], vP), None),
                        ("i", "v_add_u32 v%d, s%d, v%d" % (vP2, sT[5], vP2), None)]
        for sig in range(81):
            t, kap = slot_tk(sig, kouter)
            if "s0" in EXP and first and sig % 9 == 0:
                stamp(10 + sig // 9)
            if "inloop" in EXP and (not first) and lateral and sig in (0, 2, 8, 9, 15, 27, 34, 54, 56, 73, 80):
                k_ = 10 + (0, 2, 8, 9, 15, 27, 34, 54, 56, 73, 80).index(sig)
                nst[0] = max(nst[0], k_ + 1)
                e("s_memtime s[100:101]")
                e("s_waitcnt lgkmcnt(0)")
                e("s_cmp_eq_u32 s%d, 1" % sLoop)
                e("s_cselect_b32 s%d, s100, s%d" % (ST0 + k_, ST0 + k_))
            run(pre[sig])
            g.wait(lg="B%d" % (sig % 9))
            items = [x for x in mid[sig] if x[0] != "lm"]
            lms = [x for x in mid[sig] if x[0] == "lm"]
            n = len(items)
            n1 = (n + 2) // 3
            n0 = (n - n1) // 2
            cuts = [0, n0, n0 + n1, n]
            nxt = sig + LEAD
            for mt in range(3):
                a = ACC + (t * 3 + mt) * 4
                c = "0" if kap == 0 else v4(a)
                e("v_mfma_f32_16x16x32_bf16 %s, %s, %s, %s" % (v4(a), wreg(kap * 3 + mt), v4(BBUF[sig % 9]), c))
                if mt == 0:
                    if nxt == 9 and not first:
                        g.wait(lg="w", vm="u" if lateral else None, oldest=True)
                        e("s_barrier")
                    if nxt < 81:
                        g.ds(bread(nxt, 0, kouter), "B%d" % (nxt % 9))
                    elif not last:
                        g.ds(bread(nxt - 81, 2 * ROWB), "B%d" % (nxt % 9))
                run(items[cuts[mt]:cuts[mt + 1]])
            for x in lms:
                e(x[1])
        run(post)
        if not last:
            for d in range(3):
                e("v_add_u32 v%d, %d, v%d" % (vB[d], 2 * ROWB, vB[d]))
        if first:
            e("v_sub_u32 v%d, v%d, v%d" % (vTa, vP2, vP))
            e("v_add_u32 v%d, v%d, v%d" % (vO2, vO, vTa))
            for t in range(2):
                run(drain_items(t, 0))
                run(drain_items(t, 1))
                run(adv_o(t))

    step(first=True, lateral=True, last=False)
    stamp(6)
    e("s_mov_b32 s%d, 0" % sLoop)
    g.label("L_loop")
    base = len(g.out)
    bodies = []
    n = 0
    while True:
        st_in = (list(g.lg), list(g.vm))
        del g.out[base:]
        step(first=False, lateral=True, last=False)
        bodies.append(g.out[base:])
        n += 1
        if (g.lg, g.vm) == st_in:
            break
        assert n < 8
    for other in bodies[:-1]:
        assert len(other) == len(bodies[-1])
        for a, b in zip(other, bodies[-1]):
            if isinstance(a, Wait):
                b.merge(a)
            else:
                assert a == b
    e("s_add_u32 s%d, s%d, 1" % (sLoop, sLoop))
    e("s_cmp_lt_u32 s%d, 4" % sLoop)
    e("s_cbranch_scc1 L_loop")
    stamp(7)
    step(first=False, lateral=False, last=True)
    e("s_nop 7")
    run(drain_items(2, 0))
    run(drain_items(2, 1))
    if STAMPS:
        stamp(8)
        g.drain(vm=True)
        stamp(9)
        if "dbg" in EXP:
            e("s_memrealtime s[100:101]")
            e("s_waitcnt lgkmcnt(0)")
            e("s_mov_b32 s%d, s100" % (ST0 + 11))
            nst[0] = 12
            e("s_load_dwordx2 s[40:41], s[0:1], 40")
            e("s_waitcnt lgkmcnt(0)")
            srd(S_CF, 40, 256)
            e("s_lshl_b32 s%d, s2, 2" % sT[0])
            e("s_add_u32 s%d, s%d, s%d" % (sT[0], sT[0], sW))
            e("s_cmp_eq_u32 s%d, 400" % sT[0])
            e("s_cselect_b32 s%d, 0, 0x1000" % sT[0])
        else:
            e("s_load_dwordx2 s[40:41], s[0:1], 48")
            e("s_waitcnt lgkmcnt(0)")
            srd(S_CF, 40, 268435456)
            e("s_lshl_b32 s%d, s2, 2" % sT[0])
            e("s_add_u32 s%d, s%d, s%d" % (sT[0], sT[0], sW))
            e("s_lshl_b32 s%d, s%d, 7" % (sT[0], sT[0]))
        e("v_mov_b32 v1, 0")
        for i in range(nst[0]):
            e("v_mov_b32 v2, s%d" % (ST0 + i))
            e("buffer_store_dword v2, v1, s[%d:%d], s%d offen offset:%d" % (S_CF, S_CF + 3, sT[0], 4 * i))
        print("stamps:", nst[0])
    g.label("L_end")
    e("s_endpgm")
    g.out.append('.section .rodata,"a"')
    g.out.append(".p2align 6")
    g.out.append(".amdhsa_kernel %s_kernel" % NAME)
    g.out.append("  .amdhsa_next_free_vgpr 512")
    g.out.append("  .amdhsa_next_free_sgpr 102")
    g.out.append("  .amdhsa_accum_offset 256")
    g.out.append("  .amdhsa_group_segment_fixed_size 0")
    g.out.append("  .amdhsa_kernarg_size 56")
    g.out.append("  .amdhsa_user_sgpr_count 2")
    g.out.append("  .amdhsa_user_sgpr_kernarg_segment_ptr 1")
    g.out.append("  .amdhsa_system_sgpr_workgroup_id_x 1")
    g.out.append(".end_amdhsa_kernel")
    outp = sys.argv[1] if len(sys.argv) > 1 else "cdna_kernels/%s.s" % NAME
    open(outp, "w").write(g.text())
    print("wrote", outp)


main()
```
